```python
import torch

def _softmax(x, axis=-1):
    return torch.softmax(x, dim=axis)
def _gelu(x):
    return torch.nn.functional.gelu(x, approximate="tanh")
def _silu(x):
    return torch.nn.functional.silu(x)
def _sigmoid(x):
    return torch.sigmoid(x)
def _layernorm(x, axis=-1, eps=1e-5):
    m = x.mean(dim=axis, keepdim=True)
    v = x.var(dim=axis, keepdim=True, unbiased=False)
    return (x - m) / torch.sqrt(v + eps)
def _scatter_add(tgt, idx, src, axis=0):
    return tgt.clone().index_add_(axis, idx, src)
def _segment_sum(src, seg, n):
    out = torch.zeros((n,) + src.shape[1:], dtype=src.dtype)
    return out.index_add_(0, seg, src)
def _pad(x, pw):
    flat = tuple(v for pair in reversed(pw) for v in pair)
    return torch.nn.functional.pad(x, flat)

kernel_name = 'interleave_layers__gqa_block_cached__gqa_block_cached__decode'

def setup_inputs():

    _w = (lambda a: (lambda t: t.to(torch.bfloat16) if t.is_floating_point() else t)(torch.as_tensor(a)))
    def _A_setup():
        B, Sq, D = 8, 1, 448
        Hq, Hkv, Sk, Dh = 16, 8, 4096, 256
        assert Hq % Hkv == 0, (Hq, Hkv)
        return {
            "x": _w((lambda *s: torch.randn(*s, dtype=torch.bfloat16) * 0.1)(B, Sq, D)),
            "k_cache": _w((lambda *s: torch.randn(*s, dtype=torch.bfloat16) * 0.8)(B, Hkv, Sk, Dh)),
            "v_cache": _w((lambda *s: torch.randn(*s, dtype=torch.bfloat16) * 3.2)(B, Hkv, Sk, Dh)),
            "wq": _w((lambda *s: torch.randn(*s, dtype=torch.bfloat16) * 0.8)(D, Hq * Dh) * (D ** -0.5)),
            "wo": _w((lambda *s: torch.randn(*s, dtype=torch.bfloat16) * 3.2)(Hq * Dh, D) * ((Hq * Dh) ** -0.5)),
        }
    _A_in = _A_setup()

    def _B_setup():
        B, Sq, D = 8, 1, 448
        Hq, Hkv, Sk, Dh = 16, 8, 4096, 256
        assert Hq % Hkv == 0, (Hq, Hkv)
        return {
            "x": _w((lambda *s: torch.randn(*s, dtype=torch.bfloat16) * 0.1)(B, Sq, D)),
            "k_cache": _w((lambda *s: torch.randn(*s, dtype=torch.bfloat16) * 1.6)(B, Hkv, Sk, Dh)),
            "v_cache": _w((lambda *s: torch.randn(*s, dtype=torch.bfloat16) * 1.6)(B, Hkv, Sk, Dh)),
            "wq": _w((lambda *s: torch.randn(*s, dtype=torch.bfloat16) * 1.6)(D, Hq * Dh) * (D ** -0.5)),
            "wo": _w((lambda *s: torch.randn(*s, dtype=torch.bfloat16) * 1.6)(Hq * Dh, D) * ((Hq * Dh) ** -0.5)),
        }
    _B_in = _B_setup()

    return {
        "A_x": _A_in["x"],
        "A_k_cache": _A_in["k_cache"],
        "A_v_cache": _A_in["v_cache"],
        "A_wq": _A_in["wq"],
        "A_wo": _A_in["wo"],
        "B_x": _B_in["x"],
        "B_k_cache": _B_in["k_cache"],
        "B_v_cache": _B_in["v_cache"],
        "B_wq": _B_in["wq"],
        "B_wo": _B_in["wo"],
    }

def reference(A_x, A_k_cache, A_v_cache, A_wq, A_wo, B_x, B_k_cache, B_v_cache, B_wq, B_wo):
    def _A_ref(x, k_cache, v_cache, wq, wo):
        B, Sq, D = x.shape
        Hq, Dh = 16, 256
        Hkv = k_cache.shape[1]
        rep = Hq // Hkv
        q = (lambda x, *d: x.permute(*d))((x @ wq).reshape(B, Sq, Hq, Dh), 0, 2, 1, 3)
        k = (lambda x, n, axis: torch.repeat_interleave(x, n, dim=axis))(k_cache, rep, axis=1)
        v = (lambda x, n, axis: torch.repeat_interleave(x, n, dim=axis))(v_cache, rep, axis=1)
        scores = torch.einsum("bhqd,bhkd->bhqk", q, k) * (Dh ** -0.5)
        p = _softmax(scores, axis=-1)
        o = torch.einsum("bhqk,bhkd->bhqd", p, v)
        return (lambda x, *d: x.permute(*d))(o, 0, 2, 1, 3).reshape(B, Sq, Hq * Dh) @ wo

    def _B_ref(x, k_cache, v_cache, wq, wo):
        B, Sq, D = x.shape
        Hq, Dh = 16, 256
        Hkv = k_cache.shape[1]
        rep = Hq // Hkv
        q = (lambda x, *d: x.permute(*d))((x @ wq).reshape(B, Sq, Hq, Dh), 0, 2, 1, 3)
        k = (lambda x, n, axis: torch.repeat_interleave(x, n, dim=axis))(k_cache, rep, axis=1)
        v = (lambda x, n, axis: torch.repeat_interleave(x, n, dim=axis))(v_cache, rep, axis=1)
        scores = torch.einsum("bhqd,bhkd->bhqk", q, k) * (Dh ** -0.5)
        p = _softmax(scores, axis=-1)
        o = torch.einsum("bhqk,bhkd->bhqd", p, v)
        return (lambda x, *d: x.permute(*d))(o, 0, 2, 1, 3).reshape(B, Sq, Hq * Dh) @ wo

    x = A_x
    x = x + _A_ref(_layernorm(x, axis=-1), A_k_cache, A_v_cache, A_wq, A_wo)
    x = x + _B_ref(_layernorm(x, axis=-1), B_k_cache, B_v_cache, B_wq, B_wo)
    x = x + _A_ref(_layernorm(x, axis=-1), A_k_cache, A_v_cache, A_wq, A_wo)
    x = x + _B_ref(_layernorm(x, axis=-1), B_k_cache, B_v_cache, B_wq, B_wo)
    return x
```

```python
import sys, math

NAME = "interleave_layers__gqa_block_cached__gqa_block_cached__decode"

DEFAULT = dict(
    SSTR=8192*4, WSTR=8192, TSTR=131072,
    ROT=0,
    NH=(6, 5),
    XH3=6,
    STAG=9,
    KVPOL="nt", WPOL="",
    MV0=6,
    PRE_S1=(2, 0, 2), PRE_S2=(2, 0, 2), PRE_Q=(1, 0, 2),
    TS=False,
    SPIN=400000,
    SLEEP=1,
    DUMP=False,
)

S_KA, S_VA, S_KB, S_VB = 4, 8, 12, 16
S_WQA, S_WOA, S_WQB, S_WOB = 20, 24, 28, 32
S_WS, S_DBG, S_X, S_OUT = 36, 40, 44, 48
sWV, sHKV, sG, sI = 52, 53, 54, 55
sRING, sTOFF, sWOOFF, sWQOFF = 56, 57, 58, 59
sGB, sOPRD, sMLRD, sXPWR = 60, 61, 62, 63
sQRD, sSPIN, sC, sT = 64, 65, 68, 69
sM48 = 66
sMC2 = 70
sT2, sT3, sROT, sQWR = 72, 73, 74, 75
sOPWR, sMLWR, sBB, sT4 = 76, 77, 78, 79
sTS = 80
vTID, vLANE = 0, 1
vDVO = 2
vAL = 6
vX = 14
vAK0, vAV0 = 22, 23
vT = 24
vTS = 31
vQ = 32
vS = 64
vST = 128
L_OBUF = 131072
L_MLBUF = L_OBUF + 4*2048
L_RBUF = L_MLBUF + 256
L_XN = L_RBUF + 2048
L_QBUF = L_XN + 4096
L_END = L_QBUF + 1024
GSZ = 0x180000
W_ML = 0x100000
W_XP = 0x102000
W_Q = 0x13A000
W_Q0 = 0x300000
W_TS = 0x380000
W_DUMP = 0x390000
WS_SIZE = 0x400000
OOB = 0x80000000

def vr(a, n=1):
    return f"v{a}" if n == 1 else f"v[{a}:{a+n-1}]"
def sr(a, n=1):
    return f"s{a}" if n == 1 else f"s[{a}:{a+n-1}]"

class Home:
    def __init__(self, kind, base): self.kind, self.base = kind, base
    def r(self, j): return f"{self.kind}[{self.base+4*j}:{self.base+4*j+3}]"

HOMES = [Home('a', 32*k) for k in range(8)] + [Home('v', 160+32*k) for k in range(3)]

class G:
    def __init__(self, cfg):
        self.c = cfg
        self.L = []
        self.vm = []
        self.free = [0, 1, 2, 3]
        self.q = []
        self.slot = {}
        self.mode = None
        self.nlab = 0
        self.nts = 0
        self.tsnames = []
    def e(self, s):
        for ln in s.split("\n"):
            ln = ln.strip()
            if ln: self.L.append("    " + ln if not ln.endswith(":") else ln)
    def cmt(self, s): self.L.append("    ; " + s)
    def lab(self, p):
        self.nlab += 1
        return f"L{p}_{self.nlab}"
    def nop(self, n):
        while n > 0:
            k = min(n, 8); self.e(f"s_nop {k-1}"); n -= k
    def vmem(self, s, tok=None):
        self.e(s); self.vm.append(tok)
    def wait_tok(self, tok):
        idx = None
        for k in range(len(self.vm)-1, -1, -1):
            if self.vm[k] == tok: idx = k; break
        if idx is None: return
        n = len(self.vm) - 1 - idx
        self.e(f"s_waitcnt vmcnt({min(n,63)})")
        self.vm = self.vm[idx+1:]
    def wait_all(self):
        self.e("s_waitcnt vmcnt(0)"); self.vm = []
    def lg(self, n=0): self.e(f"s_waitcnt lgkmcnt({n})")
    def barrier(self):
        self.lg(0); self.e("s_barrier")
    def ts(self, name):
        if not self.c['TS']: return
        assert self.nts < 64
        self.e(f"s_waitcnt lgkmcnt(0)\ns_memrealtime s[{sTS}:{sTS+1}]\ns_waitcnt lgkmcnt(0)\nv_writelane_b32 v{vTS}, s{sTS}, {self.nts}")
        self.tsnames.append(name); self.nts += 1
    def pump(self, n=99):
        while self.free and self.q and n > 0:
            it = self.q.pop(0); sl = self.free.pop(0)
            self.slot[it] = sl
            self.issue(it, sl); n -= 1
    def release(self, it, pump=True):
        self.free.append(self.slot.pop(it))
        if pump: self.pump()
    def issue(self, it, sl):
        kind, l = it[0], it[1]
        c = self.c
        if kind in ('K', 'V'):
            t = it[2]
            srd = {('K',0):S_KA, ('V',0):S_VA, ('K',1):S_KB, ('V',1):S_VB}[(kind, l & 1)]
            self.e(f"s_add_u32 m0, s{sRING}, {sl*8192}")
            if c['ROT']:
                self.e(f"s_add_u32 s{sT}, s{sROT}, {t*c['TSTR']}\ns_and_b32 s{sT}, s{sT}, {16*c['TSTR']-1}\ns_add_u32 s{sT}, s{sT}, s{sTOFF}")
            else:
                self.e(f"s_add_u32 s{sT}, s{sTOFF}, {t*c['TSTR']}")
            for half in range(2):
                if half:
                    self.e(f"s_add_u32 m0, s{sRING}, {sl*8192+4096}\ns_add_u32 s{sT}, s{sT}, 4096")
                for k in range(4):
                    self.vmem(f"buffer_load_dwordx4 v{vDVO+k}, s[{srd}:{srd+3}], s{sT} offen offset:{k*1024} {c['KVPOL']} lds", it)
        elif kind == 'WO':
            srd = S_WOA if (l & 1) == 0 else S_WOB
            self.e(f"v_lshrrev_b32 v{vT}, 2, v{vLANE}\nv_mul_u32_u24 v{vT}, 896, v{vT}\nv_and_b32 v{vT+1}, 3, v{vLANE}\nv_lshl_add_u32 v{vT}, v{vT+1}, 4, v{vT}")
            for k in range(8):
                self.e(f"s_add_u32 m0, s{sRING}, {sl*8192+k*1024}\ns_add_u32 s{sT}, s{sWOOFF}, {k*16*896}")
                self.vmem(f"buffer_load_dwordx4 v{vT}, s[{srd}:{srd+3}], s{sT} offen {c['WPOL']} lds", it)
        elif kind == 'WQ':
            srd = S_WQA if (l & 1) == 0 else S_WQB
            self.e(f"v_lshrrev_b32 v{vT}, 2, v{vLANE}\nv_lshlrev_b32 v{vT}, 13, v{vT}\nv_and_b32 v{vT+1}, 3, v{vLANE}\nv_lshl_add_u32 v{vT}, v{vT+1}, 4, v{vT}")
            for k in range(7):
                self.e(f"s_add_u32 m0, s{sRING}, {sl*8192+k*1024}\ns_add_u32 s{sT}, s{sWQOFF}, {k*16*8192}")
                self.vmem(f"buffer_load_dwordx4 v{vT}, s[{srd}:{srd+3}], s{sT} offen {c['WPOL']} lds", it)
    def setmode(self, m):
        if self.mode == m: return
        self.mode = m
        b = vAK0 if m == 'K' else vAV0
        self.e(f"v_mov_b32 v{vAL}, v{b}")
        for j in range(1, 8): self.e(f"v_xor_b32 v{vAL+j}, {j*32}, v{b}")
    def k_read(self, it, dst):
        self.setmode('K')
        self.wait_tok(it)
        sl = self.slot[it]
        for j in range(8):
            self.e(f"ds_read_b128 {dst(j)}, v{vAL+j} offset:{sl*8192}")
    def k_move(self, it, home):
        self.cmt(f"move {it} -> home {home.kind}{home.base}")
        self.k_read(it, home.r)
        self.lg(0)
        self.release(it)
    def k_mfma(self, t, src, waits):
        for j in range(8):
            if waits: self.lg(7-j)
            cc = "0" if j == 0 else vr(vS+4*t, 4)
            self.e(f"v_mfma_f32_16x16x32_bf16 {vr(vS+4*t,4)}, {src(j)}, {vr(vQ+4*j,4)}, {cc}")
    def k_ring(self, it, t, home=None):
        self.cmt(f"consume {it}")
        src = home.r if home else (lambda j: vr(vST+4*j, 4))
        self.k_read(it, src)
        self.k_mfma(t, src, True)
        self.release(it)
    def v_ring(self, it, u):
        self.cmt(f"consume {it}")
        self.setmode('V')
        self.wait_tok(it)
        sl = self.slot[it]
        def rd(tp):
            self.e(f"ds_read_b64_tr_b16 {vr(vST+2*tp,2)}, v{vAL+(tp&7)} offset:{sl*8192+(tp>>3)*256}")
        for tp in range(8): rd(tp)
        for tp in range(16):
            if tp < 8:
                rd(8+tp); self.lg(8)
            else:
                self.lg(15-tp)
            cc = "0" if u == 0 else vr(vS+4*tp, 4)
            self.e(f"v_mfma_f32_16x16x16_bf16 {vr(vS+4*tp,4)}, {vr(vST+2*tp,2)}, {vr(vQ+2*u,2)}, {cc}")
        self.release(it)
    def xrow_reduce(self, v, tmp, op):
        for sw in ("v_permlane32_swap_b32", "v_permlane16_swap_b32"):
            self.e(f"v_mov_b32 v{tmp}, v{v}")
            self.nop(2)
            self.e(f"{sw} v{tmp}, v{v}")
            self.nop(2)
            self.e(f"{op} v{v}, v{v}, v{tmp}")
    def wave_sum(self, v, tmp):
        for r in (8, 4, 2, 1):
            self.nop(2)
            self.e(f"v_add_f32_dpp v{v}, v{v}, v{v} row_ror:{r} row_mask:0xf bank_mask:0xf")
        self.xrow_reduce(v, tmp, "v_add_f32")
    def poll(self, issue, check, name):
        lp, ld = self.lab("poll"+name), self.lab("done"+name)
        self.e(f"{lp}:")
        issue()
        self.wait_all()
        check()
        self.e(f"s_cbranch_vccz {ld}")
        self.e(f"s_cmp_eq_u32 s{sSPIN}, 0\ns_cbranch_scc1 {ld}\ns_sub_u32 s{sSPIN}, s{sSPIN}, 1\ns_sleep {self.c['SLEEP']}\ns_branch {lp}")
        self.e(f"{ld}:")
    def check_sent(self, regs, t):
        regs = list(regs)
        self.e(f"v_max3_u32 v{t}, v{regs[0]}, v{regs[1]}, v{regs[2]}") if len(regs) >= 3 else self.e(f"v_max_u32 v{t}, v{regs[0]}, v{regs[-1]}")
        k = 3
        while k < len(regs):
            if k+1 < len(regs):
                self.e(f"v_max3_u32 v{t}, v{t}, v{regs[k]}, v{regs[k+1]}"); k += 2
            else:
                self.e(f"v_max_u32 v{t}, v{t}, v{regs[k]}"); k += 1
        self.e(f"v_cmp_eq_u32 vcc, -1, v{t}")

def f32(x):
    import struct
    return "0x%08x" % struct.unpack("<I", struct.pack("<f", x))[0]

def build(cfg=None):
    c = dict(DEFAULT); c.update(cfg or {})
    g = G(c); e = g.e
    NH = c['NH']
    homeA = HOMES[:NH[0]]; homeB = HOMES[NH[0]:NH[0]+NH[1]]
    assert len(homeB) == NH[1]
    plan = {}
    for l in range(4):
        hm = homeA if l % 2 == 0 else homeB
        p = []
        for t in range(16):
            if t < len(hm): p.append((hm[t], l < 2))
            else: p.append((None, True))
        if l == 3:
            for k in range(min(c['XH3'], len(homeA))):
                t = len(hm) + k
                if t < 16: p[t] = (homeA[k], True)
        plan[l] = p

    e(f"s_cmp_ge_u32 s2, 256\ns_cbranch_scc1 Lend")
    e("s_load_dwordx16 s[72:87], s[0:1], 0\ns_load_dwordx8 s[88:95], s[0:1], 64\ns_load_dwordx2 s[96:97], s[0:1], 96")
    e(f"v_lshrrev_b32 v{vT}, 6, v0\nv_and_b32 v{vLANE}, 63, v0\ns_nop 1\nv_readfirstlane_b32 s{sWV}, v{vT}")
    e(f"s_and_b32 s{sHKV}, s2, 7\ns_lshr_b32 s{sG}, s2, 3\ns_and_b32 s{sG}, s{sG}, 1\ns_lshr_b32 s{sI}, s2, 4")
    e(f"s_mov_b32 s{sSPIN}, {c['SPIN']}\ns_mov_b32 s{sC}, {f32(0.0625*math.log2(math.e))}")
    e(f"s_mov_b32 s{sM48}, -1\ns_mov_b32 s{sM48+1}, 0xffff\ns_mov_b32 s{sMC2}, 0x00030003\ns_mov_b32 s{sMC2+1}, 0x00030003")
    e(f"""v_lshrrev_b32 v{vT}, 5, v{vLANE}
          v_and_b32 v{vT+1}, 31, v{vLANE}
          v_lshlrev_b32 v{vT+2}, 1, v{vT}
          v_xor_b32 v{vT+1}, v{vT+1}, v{vT+2}
          v_lshlrev_b32 v{vT+1}, 4, v{vT+1}
          v_lshl_add_u32 v{vDVO}, v{vT}, 9, v{vT+1}
          v_xor_b32 v{vDVO+1}, 64, v{vDVO}
          v_xor_b32 v{vDVO+2}, 0x80, v{vDVO}
          v_xor_b32 v{vDVO+3}, 0xc0, v{vDVO}""")
    e(f"s_lshl_b32 s{sRING}, s{sWV}, 15")
    e(f"""v_and_b32 v{vT}, 15, v{vLANE}
          v_lshrrev_b32 v{vT+1}, 4, v{vLANE}
          v_lshlrev_b32 v{vAK0}, 9, v{vT}
          v_and_b32 v{vT+2}, 7, v{vT}
          v_lshl_add_u32 v{vAK0}, v{vT+2}, 5, v{vAK0}
          v_lshrrev_b32 v{vT+2}, 1, v{vT+1}
          v_lshl_add_u32 v{vAK0}, v{vT+2}, 8, v{vAK0}
          v_and_b32 v{vT+2}, 1, v{vT+1}
          v_lshl_add_u32 v{vAK0}, v{vT+2}, 4, v{vAK0}
          v_add_u32 v{vAK0}, s{sRING}, v{vAK0}""")
    e(f"""v_lshrrev_b32 v{vT}, 2, v{vLANE}
          v_lshlrev_b32 v{vAV0}, 9, v{vT}
          v_and_b32 v{vT+2}, 7, v{vT}
          v_lshl_add_u32 v{vAV0}, v{vT+2}, 5, v{vAV0}
          v_and_b32 v{vT+2}, 3, v{vLANE}
          v_lshl_add_u32 v{vAV0}, v{vT+2}, 3, v{vAV0}
          v_add_u32 v{vAV0}, s{sRING}, v{vAV0}""")
    if c['TS']: e(f"v_mov_b32 v{vTS}, 0")
    e("s_waitcnt lgkmcnt(0)")
    e(f"s_lshr_b32 s3, s{sI}, 2\ns_lshl_b32 s{sT}, s{sG}, 2\ns_add_u32 s{sT}, s{sT}, s3")
    e(f"s_lshl_b32 s{sT}, s{sT}, 3\ns_add_u32 s{sT}, s{sT}, s{sHKV}\ns_lshl_b32 s3, s{sT}, 21")
    def srd(dst, src, size, addoff=False):
        if addoff:
            e(f"s_add_u32 s{dst}, s{src}, s3\ns_addc_u32 s{dst+1}, s{src+1}, 0\ns_and_b32 s{dst+1}, s{dst+1}, 0xffff")
        else:
            e(f"s_mov_b32 s{dst}, s{src}\ns_and_b32 s{dst+1}, s{src+1}, 0xffff")
        e(f"s_mov_b32 s{dst+2}, {size}\ns_mov_b32 s{dst+3}, 0x00020000")
    srd(S_KA, 74, 1 << 21, True); srd(S_VA, 76, 1 << 21, True)
    srd(S_KB, 84, 1 << 21, True); srd(S_VB, 86, 1 << 21, True)
    srd(S_WQA, 78, 448*4096*2); srd(S_WOA, 80, 448*4096*2)
    srd(S_WQB, 88, 448*4096*2); srd(S_WOB, 90, 448*4096*2)
    srd(S_WS, 96, WS_SIZE); srd(S_DBG, 94, 256); srd(S_X, 72, 7168); srd(S_OUT, 92, 7168)
    e(f"s_lshr_b32 s{sBB}, s{sI}, 2")
    e(f"s_and_b32 s{sT}, s{sI}, 3\ns_mul_i32 s{sTOFF}, s{sT}, {c['SSTR']}\ns_mul_i32 s{sT}, s{sWV}, {c['WSTR']}\ns_add_u32 s{sTOFF}, s{sTOFF}, s{sT}")
    if c['ROT']:
        e(f"s_lshr_b32 s{sT}, s2, 3\ns_add_u32 s{sT}, s{sT}, s{sHKV}\ns_mul_i32 s{sT}, s{sT}, {c['ROT']}\ns_and_b32 s{sT}, s{sT}, 15\ns_mul_i32 s{sROT}, s{sT}, {c['TSTR']}")
    e(f"s_lshl_b32 s{sT}, s{sHKV}, 2\ns_add_u32 s{sT}, s{sT}, s{sWV}\ns_mul_i32 s{sWOOFF}, s{sT}, {128*896}")
    e(f"s_min_u32 s{sT4}, s{sI}, 13\ns_lshl_b32 s{sT}, s{sT4}, 6\ns_add_u32 s{sWOOFF}, s{sWOOFF}, s{sT}")
    e(f"s_mul_i32 s{sWQOFF}, s{sWV}, {112*8192}\ns_lshl_b32 s{sT}, s{sHKV}, 10\ns_add_u32 s{sWQOFF}, s{sWQOFF}, s{sT}\ns_lshl_b32 s{sT}, s{sI}, 6\ns_add_u32 s{sWQOFF}, s{sWQOFF}, s{sT}")
    e(f"s_mul_i32 s{sGB}, s{sG}, {GSZ}")
    e(f"s_lshl_b32 s{sT}, s{sHKV}, 15\ns_add_u32 s{sOPRD}, s{sGB}, s{sT}")
    e(f"s_lshl_b32 s{sT}, s{sI}, 11\ns_add_u32 s{sOPWR}, s{sOPRD}, s{sT}")
    e(f"s_lshl_b32 s{sT}, s{sHKV}, 8\ns_add_u32 s{sMLRD}, s{sGB}, s{sT}\ns_add_u32 s{sMLRD}, s{sMLRD}, {W_ML}")
    e(f"s_lshl_b32 s{sT}, s{sI}, 4\ns_add_u32 s{sMLWR}, s{sMLRD}, s{sT}")
    e(f"s_mul_i32 s{sT}, s{sHKV}, 7168\ns_add_u32 s{sXPWR}, s{sGB}, s{sT}\ns_lshl_b32 s{sT}, s{sT4}, 7\ns_add_u32 s{sXPWR}, s{sXPWR}, s{sT}\ns_add_u32 s{sXPWR}, s{sXPWR}, {W_XP}")
    e(f"s_lshl_b32 s{sQRD}, s{sBB}, 13\ns_lshl_b32 s{sT}, s{sHKV}, 10\ns_add_u32 s{sQRD}, s{sQRD}, s{sT}")
    e(f"s_lshl_b32 s{sQWR}, s{sI}, 6\ns_add_u32 s{sQWR}, s{sQWR}, s{sT}")
    def qbase(l, dst, rel):
        if l == 0:
            e(f"s_lshl_b32 s{dst}, s{sG}, 15\ns_add_u32 s{dst}, s{dst}, {W_Q0}\ns_add_u32 s{dst}, s{dst}, s{rel}")
        else:
            e(f"s_add_u32 s{dst}, s{sGB}, {W_Q+(l-1)*32768}\ns_add_u32 s{dst}, s{dst}, s{rel}")

    Q = []
    Q.append(('WQ', 0))
    for l in range(4):
        for t in range(16):
            if plan[l][t][1]: Q.append(('K', l, t))
        for t in range(16): Q.append(('V', l, t))
        Q.append(('WO', l))
        if l < 3: Q.append(('WQ', l+1))
    g.q = Q

    g.ts("start")
    e(f"s_lshl_b32 s{sT}, s{sG}, 2\ns_add_u32 s{sT}, s{sT}, s{sWV}\ns_mul_i32 s{sT}, s{sT}, 896")
    e(f"v_lshlrev_b32 v{vT}, 3, v{vLANE}\nv_mov_b32 v{vT+2}, {OOB}\nv_add_u32 v{vT+1}, 512, v{vT}\nv_cndmask_b32 v{vT+1}, v{vT+2}, v{vT+1}, s[{sM48}:{sM48+1}]")
    g.vmem(f"buffer_load_dwordx2 v[{vST}:{vST+1}], v{vT}, s[{S_X}:{S_X+3}], s{sT} offen", 'x')
    g.vmem(f"buffer_load_dwordx2 v[{vST+2}:{vST+3}], v{vT+1}, s[{S_X}:{S_X+3}], s{sT} offen", 'x')
    g.pump(1)
    e(f"s_lshl_b32 s{sT}, s{sI}, 3\ns_add_u32 s{sT}, s{sT}, s{sHKV}\ns_mul_i32 s{sT}, s{sT}, 12288\ns_add_u32 s{sT}, s{sT}, s{sGB}")
    e(f"v_lshlrev_b32 v{vT+3}, 4, v0")
    for k in range(4): e(f"v_mov_b32 v{vST+4+k}, -1")
    for k in range(3):
        if k: e(f"s_add_u32 s{sT}, s{sT}, 4096")
        g.vmem(f"buffer_store_dwordx4 v[{vST+4}:{vST+7}], v{vT+3}, s[{S_WS}:{S_WS+3}], s{sT} offen sc1", 'fill')
    g.pump()
    g.wait_tok('x')
    e(f"""v_lshlrev_b32 v{vX}, 16, v{vST}
          v_and_b32 v{vX+1}, 0xffff0000, v{vST}
          v_lshlrev_b32 v{vX+2}, 16, v{vST+1}
          v_and_b32 v{vX+3}, 0xffff0000, v{vST+1}
          v_lshlrev_b32 v{vX+4}, 16, v{vST+2}
          v_and_b32 v{vX+5}, 0xffff0000, v{vST+2}
          v_lshlrev_b32 v{vX+6}, 16, v{vST+3}
          v_and_b32 v{vX+7}, 0xffff0000, v{vST+3}""")

    vAW = vT + 5
    def calc_aw():
        e(f"v_lshrrev_b32 v{vAW}, 2, v{vLANE}\nv_lshlrev_b32 v{vAW}, 6, v{vAW}\nv_and_b32 v{vT+6}, 3, v{vLANE}\nv_lshl_add_u32 v{vAW}, v{vT+6}, 3, v{vAW}\nv_add_u32 v{vAW}, s{sRING}, v{vAW}")
    WOF = 64
    WQF = 96
    def read_wo(l):
        it = ('WO', l)
        calc_aw()
        g.wait_tok(it)
        sl = g.slot[it]
        n = 0
        for st in range(4):
            for ct in range(2):
                for hf in range(2):
                    e(f"ds_read_b64_tr_b16 {vr(WOF+8*st+4*ct+2*hf,2)}, v{vAW} offset:{sl*8192+st*2048+hf*1024+ct*32}")
                    n += 1
                    if n == 8: g.lg(4)
        g.lg(0)
        g.release(it, pump=False)
    def read_wq(l):
        it = ('WQ', l)
        calc_aw()
        g.wait_tok(it)
        sl = g.slot[it]
        n = 0
        for st in range(7):
            for ct in range(2):
                e(f"ds_read_b64_tr_b16 {vr(WQF+4*st+2*ct,2)}, v{vAW} offset:{sl*8192+st*1024+ct*32}")
                n += 1
                if n == 8: g.lg(4)
        g.lg(0)
        g.release(it, pump=False)

    def s2_compute(l):
        g.cmt(f"S2 compute -> Q[{l}]")
        d = vST
        t = vT
        e(f"""v_add_f32 v{t}, v{vX}, v{vX+1}
              v_add_f32 v{t+1}, v{vX+2}, v{vX+3}
              v_add_f32 v{t+2}, v{vX+4}, v{vX+5}
              v_add_f32 v{t+3}, v{vX+6}, v{vX+7}
              v_add_f32 v{t}, v{t}, v{t+1}
              v_add_f32 v{t+2}, v{t+2}, v{t+3}
              v_add_f32 v{t}, v{t}, v{t+2}""")
        g.wave_sum(t, t+1)
        e(f"v_mul_f32 v{t}, {f32(1.0/448)}, v{t}")
        for k in range(8): e(f"v_sub_f32 v{d+k}, v{vX+k}, v{t}")
        for k in range(4, 8): e(f"v_cndmask_b32 v{d+k}, 0, v{d+k}, s[{sM48}:{sM48+1}]")
        e(f"v_mul_f32 v{t}, v{d}, v{d}")
        for k in range(1, 8): e(f"v_fmac_f32 v{t}, v{d+k}, v{d+k}")
        g.wave_sum(t, t+1)
        e(f"v_mov_b32 v{t+1}, {f32(1e-5)}\nv_fmac_f32 v{t+1}, {f32(1.0/448)}, v{t}\nv_rsq_f32 v{t+1}, v{t+1}")
        g.nop(1)
        for k in range(8): e(f"v_mul_f32 v{d+k}, v{d+k}, v{t+1}")
        for k in range(4): e(f"v_cvt_pk_bf16_f32 v{d+8+k}, v{d+2*k}, v{d+2*k+1}")
        e(f"s_lshl_b32 s{sT}, s{sWV}, 10\ns_add_u32 s{sT}, s{sT}, {L_XN}\nv_lshlrev_b32 v{t}, 3, v{vLANE}\nv_add_u32 v{t}, s{sT}, v{t}")
        e(f"ds_write_b64 v{t}, v[{d+8}:{d+9}]\nds_write_b64 v{t}, v[{d+10}:{d+11}] offset:512")
        g.barrier()
        e(f"""v_and_b32 v{t}, 3, v{vLANE}
              v_lshlrev_b32 v{t}, 10, v{t}
              v_lshrrev_b32 v{t+1}, 4, v{vLANE}
              v_lshl_add_u32 v{t}, v{t+1}, 3, v{t}
              s_mul_i32 s{sT}, s{sWV}, 224
              s_add_u32 s{sT}, s{sT}, {L_XN}
              v_add_u32 v{t}, s{sT}, v{t}""")
        XB, D = 32, 48
        for st in range(7): e(f"ds_read_b64 {vr(XB+2*st,2)}, v{t} offset:{st*32}")
        for st in range(7):
            g.lg(6-st)
            for ct in range(2):
                cc = "0" if st == 0 else vr(D+4*ct, 4)
                e(f"v_mfma_f32_16x16x16_bf16 {vr(D+4*ct,4)}, {vr(WQF+4*st+2*ct,2)}, {vr(XB+2*st,2)}, {cc}")
        e(f"""v_and_b32 v{t}, 3, v{vLANE}
              v_lshlrev_b32 v{t}, 7, v{t}
              v_lshrrev_b32 v{t+1}, 4, v{vLANE}
              v_lshl_add_u32 v{t}, v{t+1}, 4, v{t}
              s_lshl_b32 s{sT}, s{sWV}, 9
              s_add_u32 s{sT}, s{sT}, {L_RBUF}
              v_add_u32 v{t}, s{sT}, v{t}""")
        g.nop(8)
        e(f"ds_write_b128 v{t}, {vr(D,4)}\nds_write_b128 v{t}, {vr(D+4,4)} offset:64")
        g.barrier()
        e(f"v_and_b32 v{t}, 15, v{vLANE}\nv_lshlrev_b32 v{t}, 5, v{t}\nv_add_u32 v{t}, {L_RBUF}, v{t}")
        R = 64
        for w in range(4):
            e(f"ds_read_b128 {vr(R+8*w,4)}, v{t} offset:{w*512}\nds_read_b128 {vr(R+8*w+4,4)}, v{t} offset:{w*512+16}")
        e(f"""v_lshrrev_b32 v{t+1}, 2, v{vLANE}
              v_lshlrev_b32 v{t+1}, 13, v{t+1}
              v_and_b32 v{t+2}, 3, v{vLANE}
              v_lshl_add_u32 v{t+1}, v{t+2}, 4, v{t+1}
              v_cmp_gt_u32 vcc, 16, v0
              v_mov_b32 v{t+2}, {OOB}
              s_nop 0
              v_cndmask_b32 v{t+1}, v{t+2}, v{t+1}, vcc""")
        qbase(l, sT2, sQWR)
        g.lg(0)
        for k in range(8):
            e(f"v_add_f32 v{R+k}, v{R+k}, v{R+8+k}\nv_add_f32 v{R+16+k}, v{R+16+k}, v{R+24+k}")
        for k in range(8): e(f"v_add_f32 v{R+k}, v{R+k}, v{R+16+k}")
        for k in range(4): e(f"v_cvt_pk_bf16_f32 v{R+8+k}, v{R+2*k}, v{R+2*k+1}")
        for k in range(4): e(f"v_min_u32 v{R+8+k}, -2, v{R+8+k}")
        g.vmem(f"buffer_store_dwordx4 {vr(R+8,4)}, v{t+1}, s[{S_WS}:{S_WS+3}], s{sT2} offen sc1", ('qst', l))

    def load_q(l):
        g.cmt(f"load q for layer {l}")
        qbase(l, sT2, sQRD)
        e(f"v_lshlrev_b32 v{vT}, 4, v{vLANE}")
        R = vST
        def issue(): g.vmem(f"buffer_load_dwordx4 {vr(R,4)}, v{vT}, s[{S_WS}:{S_WS+3}], s{sT2} offen sc1", 'q')
        if l == 0:
            issue(); g.wait_tok('q')
        else:
            g.poll(issue, lambda: g.check_sent(range(R, R+4), vT+1), f"q{l}")
        e(f"v_add_u32 v{vT}, {L_QBUF}, v{vT}\nds_write_b128 v{vT}, {vr(R,4)}")
        e(f"""v_and_b32 v{vT+1}, 1, v{vLANE}
              v_lshlrev_b32 v{vT+1}, 9, v{vT+1}
              v_bfe_u32 v{vT+2}, v{vLANE}, 4, 1
              v_lshl_add_u32 v{vT+1}, v{vT+2}, 4, v{vT+1}
              v_lshrrev_b32 v{vT+2}, 5, v{vLANE}
              v_lshl_add_u32 v{vT+1}, v{vT+2}, 8, v{vT+1}
              v_add_u32 v{vT+1}, {L_QBUF}, v{vT+1}""")
        g.lg(0)
        for j in range(8): e(f"ds_read_b128 {vr(vQ+4*j,4)}, v{vT+1} offset:{j*32}")
        g.lg(0)

    moved = set()
    def early_moves(l, n):
        for t in range(16):
            if n <= 0: break
            hm, ld = plan[l][t]
            it = ('K', l, t)
            if hm is not None and ld and it not in moved and it in g.slot:
                g.k_move(it, hm); moved.add(it); n -= 1

    read_wq(0)
    s2_compute(0)
    g.ts("q0 stored")
    g.pump()
    g.wait_tok(('qst', 0))
    e("s_barrier")
    e(f"v_cmp_eq_u32 vcc, 0, v0\nv_mov_b32 v{vT}, {OOB}\nv_mov_b32 v{vT+1}, s2\nv_mov_b32 v{vT+2}, 1\nv_cndmask_b32 v{vT}, v{vT}, v{vT+1}, vcc")
    g.vmem(f"buffer_store_byte v{vT+2}, v{vT}, s[{S_DBG}:{S_DBG+3}], 0 offen sc1", 'flag')
    early_moves(0, c['MV0'])
    g.ts("moves0")
    e(f"""v_bfe_u32 v{vT}, v{vLANE}, 1, 1
          v_cmp_eq_u32 vcc, s{sG}, v{vT}
          v_mov_b32 v{vT+1}, 0
          v_mov_b32 v{vT+2}, 0x01010101
          v_cndmask_b32 v{vT+1}, v{vT+1}, v{vT+2}, vcc""")
    if c['STAG'] >= 0:
        e(f"""s_xor_b32 s{sT}, s2, 8
              s_and_b32 s{sT2}, s{sT}, 3
              s_lshl_b32 s{sT2}, s{sT2}, 3
              s_lshl_b32 s{sT2}, 2, s{sT2}
              s_mul_i32 s{sT2}, s{sT2}, s{sG}
              s_lshr_b32 s{sT}, s{sT}, 2
              v_cmp_eq_u32 vcc, s{sT}, v{vLANE}
              v_mov_b32 v{vT+2}, s{sT2}
              s_nop 0
              v_cndmask_b32 v{vT+2}, 0, v{vT+2}, vcc
              v_or_b32 v{vT+1}, v{vT+1}, v{vT+2}""")
    e(f"v_lshlrev_b32 v{vT}, 2, v{vLANE}")
    def issue_f(): g.vmem(f"buffer_load_dword v{vT+2}, v{vT}, s[{S_DBG}:{S_DBG+3}], 0 offen sc1", 'f')
    def check_f(): e(f"v_and_b32 v{vT+2}, v{vT+2}, v{vT+1}\nv_cmp_ne_u32 vcc, v{vT+2}, v{vT+1}")
    g.poll(issue_f, check_f, "init")
    g.ts("init done")

    for l in range(4):
        load_q(l)
        g.ts(f"q{l} ready")
        order = [t for t in range(16) if plan[l][t][0] is not None and (not plan[l][t][1] or ('K', l, t) in moved)]
        order += [t for t in range(16) if t not in order]
        for n, t in enumerate(order):
            hm, ld = plan[l][t]
            it = ('K', l, t)
            if hm is not None and (not ld or it in moved):
                g.cmt(f"resident K tile {t}")
                g.k_mfma(t, hm.r, False)
            else:
                g.k_ring(it, t, hm)
            if l == 0 and c['STAG'] >= 0 and n == c['STAG']:
                e(f"v_cmp_eq_u32 vcc, 0, v0\nv_mov_b32 v{vT}, {OOB}\nv_mov_b32 v{vT+1}, s2\nv_mov_b32 v{vT+2}, 3\nv_cndmask_b32 v{vT}, v{vT}, v{vT+1}, vcc")
                g.vmem(f"buffer_store_byte v{vT+2}, v{vT}, s[{S_DBG}:{S_DBG+3}], 0 offen sc1", 'flag')
        g.ts(f"K{l} done")
        g.nop(8)
        m, t1, ls, nm = vT, vT+1, vT+2, vT+3
        e(f"v_max3_f32 v{m}, v{vS}, v{vS+1}, v{vS+2}\nv_max3_f32 v{t1}, v{vS+3}, v{vS+4}, v{vS+5}")
        k = 6
        while k < 64:
            tgt = m if ((k - 6)//2) % 2 == 0 else t1
            e(f"v_max3_f32 v{tgt}, v{tgt}, v{vS+k}, v{vS+k+1}"); k += 2
        e(f"v_max_f32 v{m}, v{m}, v{t1}")
        g.xrow_reduce(m, t1, "v_max_f32")
        e(f"v_mul_f32 v{m}, s{sC}, v{m}\nv_mov_b32 v{ls}, 0\nv_mov_b32 v{nm}, 0")
        for t in range(16):
            b = vS + 4*t
            for r in range(4): e(f"v_fma_f32 v{b+r}, v{b+r}, s{sC}, -v{m}")
            for r in range(4): e(f"v_exp_f32 v{b+r}, v{b+r}")
            e(f"v_cvt_pk_bf16_f32 v{vQ+2*t}, v{b}, v{b+1}\nv_add_f32 v{ls}, v{ls}, v{b}\nv_add_f32 v{nm}, v{nm}, v{b+1}")
            e(f"v_cvt_pk_bf16_f32 v{vQ+2*t+1}, v{b+2}, v{b+3}\nv_add_f32 v{ls}, v{ls}, v{b+2}\nv_add_f32 v{nm}, v{nm}, v{b+3}")
        e(f"v_add_f32 v{ls}, v{ls}, v{nm}")
        g.xrow_reduce(ls, t1, "v_add_f32")
        e(f"""v_mov_b32 v{t1}, v{ls}
              v_and_b32 v{nm}, 1, v{vLANE}
              v_lshlrev_b32 v{nm}, 3, v{nm}
              s_lshl_b32 s{sT}, s{sWV}, 4
              s_add_u32 s{sT}, s{sT}, {L_MLBUF}
              v_add_u32 v{nm}, s{sT}, v{nm}
              ds_write_b64 v{nm}, v[{m}:{m+1}]""")
        g.ts(f"sm{l} done")
        for u in range(16):
            g.v_ring(('V', l, u), u)
        g.ts(f"V{l} done")
        e(f"""v_and_b32 v{vT}, 1, v{vLANE}
              v_lshlrev_b32 v{vT}, 10, v{vT}
              v_lshrrev_b32 v{vT+1}, 4, v{vLANE}
              v_lshl_add_u32 v{vT}, v{vT+1}, 4, v{vT}
              s_lshl_b32 s{sT}, s{sWV}, 11
              s_add_u32 s{sT}, s{sT}, {L_OBUF}
              v_add_u32 v{vT}, s{sT}, v{vT}""")
        g.nop(8)
        e(f"s_mov_b64 exec, s[{sMC2}:{sMC2+1}]")
        for tp in range(16):
            e(f"ds_write_b128 v{vT}, {vr(vS+4*tp,4)} offset:{tp*64}")
            if tp == 11: g.lg(4)
        e("s_mov_b64 exec, -1")
        g.barrier()
        e(f"""s_and_b32 s{sT}, s{sWV}, 1
              s_lshl_b32 s{sT2}, s{sT}, 3
              s_add_u32 s{sT2}, s{sT2}, {L_MLBUF}
              v_mov_b32 v{vT}, s{sT2}
              s_lshl_b32 s{sT2}, s{sT}, 10
              s_add_u32 s{sT2}, s{sT2}, {L_OBUF}
              v_lshlrev_b32 v{vT+1}, 4, v{vLANE}
              v_add_u32 v{vT+2}, s{sT2}, v{vT+1}""")
        ML, OO = 32, 48
        for w in range(4): e(f"ds_read_b64 {vr(ML+2*w,2)}, v{vT} offset:{w*16}")
        for w in range(4): e(f"ds_read_b128 {vr(OO+4*w,4)}, v{vT+2} offset:{w*2048}")
        e(f"""s_lshl_b32 s{sT3}, s{sT}, 10
              v_add_u32 v{vT+1}, s{sT3}, v{vT+1}
              v_cmp_gt_u32 vcc, 128, v0
              v_mov_b32 v{vT+3}, {OOB}
              s_lshl_b32 s{sT3}, s{sT}, 3
              v_cndmask_b32 v{vT+1}, v{vT+3}, v{vT+1}, vcc
              v_and_b32 v{vT+4}, 0xbf, v0
              v_cmp_eq_u32 vcc, 0, v{vT+4}
              v_mov_b32 v{vT+4}, s{sT3}
              s_nop 0
              v_cndmask_b32 v{vT+3}, v{vT+3}, v{vT+4}, vcc""")
        g.lg(4)
        MM = 44
        e(f"""v_max3_f32 v{MM}, v{ML}, v{ML+2}, v{ML+4}
              v_max_f32 v{MM}, v{MM}, v{ML+6}""")
        for w in range(4): e(f"v_sub_f32 v{ML+2*w}, v{ML+2*w}, v{MM}")
        for w in range(4): e(f"v_exp_f32 v{ML+2*w}, v{ML+2*w}")
        e(f"v_mul_f32 v{MM+1}, v{ML}, v{ML+1}")
        for w in range(1, 4): e(f"v_fmac_f32 v{MM+1}, v{ML+2*w}, v{ML+2*w+1}")
        g.lg(0)
        for k in range(4): e(f"v_mul_f32 v{OO+k}, v{OO+k}, v{ML}")
        for w in range(1, 4):
            for k in range(4): e(f"v_fmac_f32 v{OO+k}, v{OO+4*w+k}, v{ML+2*w}")
        e(f"s_add_u32 s{sT2}, s{sOPWR}, {l*8*32768}\ns_add_u32 s{sT3}, s{sMLWR}, {l*2048}")
        g.vmem(f"buffer_store_dwordx4 {vr(OO,4)}, v{vT+1}, s[{S_WS}:{S_WS+3}], s{sT2} offen sc1", 'opst')
        g.vmem(f"buffer_store_dwordx2 {vr(MM,2)}, v{vT+3}, s[{S_WS}:{S_WS+3}], s{sT3} offen sc1", 'mlst')
        g.ts(f"OP{l} stored")
        g.nop(2)
        read_wo(l)
        if l < 3: read_wq(l+1)
        g.pump()
        if l < 3: early_moves(l+1, c['PRE_S1'][l])
        e(f"""v_and_b32 v{vT}, 15, v{vLANE}
              v_lshlrev_b32 v{vT+1}, 4, v{vT}
              v_lshlrev_b32 v{vT}, 11, v{vT}
              v_lshrrev_b32 v{vT+2}, 4, v{vLANE}
              v_lshl_add_u32 v{vT}, v{vT+2}, 4, v{vT}
              s_lshl_b32 s{sT}, s{sWV}, 9
              v_add_u32 v{vT}, s{sT}, v{vT}
              s_lshr_b32 s{sT}, s{sWV}, 1
              s_lshl_b32 s{sT}, s{sT}, 3
              v_add_u32 v{vT+1}, s{sT}, v{vT+1}
              s_add_u32 s{sT2}, s{sOPRD}, {l*8*32768}
              s_add_u32 s{sT3}, s{sMLRD}, {l*2048}""")
        M2 = 56
        def issue_s1():
            g.vmem(f"buffer_load_dwordx2 {vr(M2,2)}, v{vT+1}, s[{S_WS}:{S_WS+3}], s{sT3} offen sc1", 's1')
            for u in range(8):
                g.vmem(f"buffer_load_dwordx4 {vr(vST+4*u,4)}, v{vT}, s[{S_WS}:{S_WS+3}], s{sT2} offen offset:{u*64} sc1", 's1')
        g.poll(issue_s1, lambda: g.check_sent([M2, M2+1] + list(range(vST, vST+32)), vT+2), f"s1_{l}")
        g.ts(f"S1_{l} got")
        t = vT
        e(f"s_nop 1\nv_mov_b32_dpp v{t}, v{M2} quad_perm:[1,0,3,2] row_mask:0xf bank_mask:0xf\nv_max_f32 v{t}, v{t}, v{M2}\ns_nop 1")
        e(f"v_mov_b32_dpp v{t+1}, v{t} quad_perm:[2,3,0,1] row_mask:0xf bank_mask:0xf\nv_max_f32 v{t}, v{t}, v{t+1}")
        e(f"v_sub_f32 v{t}, v{M2}, v{t}\nv_exp_f32 v{t}, v{t}\ns_nop 0\nv_mul_f32 v{t+1}, v{t}, v{M2+1}\ns_nop 1")
        e(f"v_mov_b32_dpp v{t+2}, v{t+1} quad_perm:[1,0,3,2] row_mask:0xf bank_mask:0xf\nv_add_f32 v{t+1}, v{t+1}, v{t+2}\ns_nop 1")
        e(f"v_mov_b32_dpp v{t+2}, v{t+1} quad_perm:[2,3,0,1] row_mask:0xf bank_mask:0xf\nv_add_f32 v{t+1}, v{t+1}, v{t+2}")
        e(f"v_rcp_f32 v{t+1}, v{t+1}\ns_nop 0\nv_mul_f32 v{t}, v{t}, v{t+1}")
        B1, D = 32, 48
        for k in range(32): e(f"v_mul_f32 v{vST+k}, v{vST+k}, v{t}")
        for k in range(16): e(f"v_cvt_pk_bf16_f32 v{B1+k}, v{vST+2*k}, v{vST+2*k+1}")
        g.nop(2)
        for st in range(4):
            for ct in range(2):
                cc = "0" if st == 0 else vr(D+4*ct, 4)
                e(f"v_mfma_f32_16x16x32_bf16 {vr(D+4*ct,4)}, {vr(WOF+8*st+4*ct,4)}, {vr(B1+4*st,4)}, {cc}")
        e(f"""v_bfe_u32 v{t}, v{vLANE}, 2, 2
              v_lshlrev_b32 v{t}, 7, v{t}
              v_lshrrev_b32 v{t+1}, 4, v{vLANE}
              v_lshl_add_u32 v{t}, v{t+1}, 4, v{t}
              s_lshl_b32 s{sT}, s{sWV}, 9
              s_add_u32 s{sT}, s{sT}, {L_RBUF}
              v_add_u32 v{t}, s{sT}, v{t}""")
        g.nop(8)
        for qp in ("[1,0,3,2]", "[2,3,0,1]"):
            for k in range(8):
                e(f"v_add_f32_dpp v{D+k}, v{D+k}, v{D+k} quad_perm:{qp} row_mask:0xf bank_mask:0xf")
        e(f"ds_write_b128 v{t}, {vr(D,4)}\nds_write_b128 v{t}, {vr(D+4,4)} offset:64")
        g.barrier()
        R = 32
        e(f"v_and_b32 v{t}, 31, v{vLANE}\nv_lshlrev_b32 v{t}, 4, v{t}\nv_add_u32 v{t+1}, {L_RBUF}, v{t}")
        for w in range(4): e(f"ds_read_b128 {vr(R+4*w,4)}, v{t+1} offset:{w*512}")
        e(f"""v_bfe_u32 v{t+2}, v{vLANE}, 3, 2
              v_mul_u32_u24 v{t+2}, 1792, v{t+2}
              v_and_b32 v{t+3}, 7, v{vLANE}
              v_lshl_add_u32 v{t+2}, v{t+3}, 4, v{t+2}
              s_cmp_lt_u32 s{sI}, 14
              s_cselect_b32 s{sT}, 32, 0
              v_cmp_gt_u32 vcc, s{sT}, v0
              v_mov_b32 v{t+3}, {OOB}
              s_add_u32 s{sT2}, s{sXPWR}, {l*8*7168}
              v_cndmask_b32 v{t+2}, v{t+3}, v{t+2}, vcc""")
        g.lg(0)
        for k in range(4):
            e(f"v_add_f32 v{R+k}, v{R+k}, v{R+4+k}\nv_add_f32 v{R+8+k}, v{R+8+k}, v{R+12+k}")
        for k in range(4): e(f"v_add_f32 v{R+k}, v{R+k}, v{R+8+k}")
        g.vmem(f"buffer_store_dwordx4 {vr(R,4)}, v{t+2}, s[{S_WS}:{S_WS+3}], s{sT2} offen sc1", 'xpst')
        g.ts(f"XP{l} stored")
        if l == 3:
            e(f"""s_and_b32 s{sT}, s{sI}, 3
                  s_or_b32 s{sT}, s{sT}, s{sHKV}
                  s_xor_b32 s{sT2}, s{sWV}, s{sBB}
                  s_or_b32 s{sT}, s{sT}, s{sT2}
                  s_cmp_lg_u32 s{sT}, 0
                  s_cbranch_scc1 Lfin""")
        else:
            g.nop(2)
            g.pump()
            early_moves(l+1, c['PRE_S2'][l])
        e(f"""s_mul_i32 s{sT}, s{sWV}, 1792
              v_lshlrev_b32 v{t}, 4, v{vLANE}
              v_add_u32 v{t}, s{sT}, v{t}
              v_add_u32 v{t+1}, 1024, v{t}
              v_mov_b32 v{t+2}, {OOB}
              v_cndmask_b32 v{t+1}, v{t+2}, v{t+1}, s[{sM48}:{sM48+1}]
              s_add_u32 s{sT2}, s{sGB}, {W_XP + l*8*7168}""")
        GR = list(range(32, 64)) + list(range(128, 160))
        def issue_s2():
            for hk in range(8):
                if hk: e(f"s_add_u32 s{sT3}, s{sT2}, {hk*7168}")
                so = sT2 if hk == 0 else sT3
                a = GR[8*hk]
                g.vmem(f"buffer_load_dwordx4 {vr(a,4)}, v{t}, s[{S_WS}:{S_WS+3}], s{so} offen sc1", 's2')
                g.vmem(f"buffer_load_dwordx4 {vr(a+4,4)}, v{t+1}, s[{S_WS}:{S_WS+3}], s{so} offen sc1", 's2')
        g.poll(issue_s2, lambda: g.check_sent(GR, t+2), f"s2_{l}")
        g.ts(f"S2_{l} got")
        for step in (4, 2, 1):
            for hk in range(step):
                for k in range(8):
                    e(f"v_add_f32 v{GR[8*hk]+k}, v{GR[8*hk]+k}, v{GR[8*(hk+step)]+k}")
        for k in range(8): e(f"v_add_f32 v{vX+k}, v{vX+k}, v{GR[0]+k}")
        if l < 3:
            s2_compute(l+1)
            g.ts(f"Q{l+1} stored")
            g.nop(2)
            g.pump()
            early_moves(l+1, c['PRE_Q'][l])
        else:
            for k in range(4): e(f"v_cvt_pk_bf16_f32 v{32+k}, v{vX+2*k}, v{vX+2*k+1}")
            e(f"""s_lshl_b32 s{sT}, s{sG}, 2
                  s_add_u32 s{sT}, s{sT}, s{sWV}
                  s_mul_i32 s{sT}, s{sT}, 896
                  v_lshlrev_b32 v{t}, 3, v{vLANE}
                  v_add_u32 v{t+1}, 512, v{t}
                  v_mov_b32 v{t+2}, {OOB}
                  v_cndmask_b32 v{t+1}, v{t+2}, v{t+1}, s[{sM48}:{sM48+1}]""")
            g.vmem(f"buffer_store_dwordx2 v[32:33], v{t}, s[{S_OUT}:{S_OUT+3}], s{sT} offen")
            g.vmem(f"buffer_store_dwordx2 v[34:35], v{t+1}, s[{S_OUT}:{S_OUT+3}], s{sT} offen")
            g.ts("out stored")
    e("Lfin:")
    assert not g.q and len(g.free) == 4, (g.q, g.free)
    if c['TS']:
        g.ts("end")
        e(f"""s_lshl_b32 s{sT}, s2, 2
              s_add_u32 s{sT}, s{sT}, s{sWV}
              s_lshl_b32 s{sT}, s{sT}, 8
              s_add_u32 s{sT}, s{sT}, {W_TS_ABS}
              v_lshlrev_b32 v{vT}, 2, v{vLANE}
              buffer_store_dword v{vTS}, v{vT}, s[{S_WS}:{S_WS+3}], s{sT} offen""")
    e("Lend:")
    body = "\n".join(g.L)
    hdr = f"""; {NAME}
; @launch grid=(256,1,1) block=(256,1,1) lds={L_END}
.amdgcn_target "amdgcn-amd-amdhsa--gfx950"
.text
.globl {NAME}_kernel
.p2align 8
.type {NAME}_kernel,@function
{NAME}_kernel:
"""
    ftr = f"""
s_endpgm
.section .rodata,"a"
.p2align 6
.amdhsa_kernel {NAME}_kernel
  .amdhsa_next_free_vgpr 512
  .amdhsa_next_free_sgpr 102
  .amdhsa_accum_offset 256
  .amdhsa_group_segment_fixed_size 0
  .amdhsa_kernarg_size 104
  .amdhsa_user_sgpr_count 2
  .amdhsa_user_sgpr_kernarg_segment_ptr 1
  .amdhsa_system_sgpr_workgroup_id_x 1
.end_amdhsa_kernel
"""
    return hdr + body + ftr, g.tsnames

W_TS_ABS = 0x340000

if __name__ == "__main__":
    import json
    out = sys.argv[1]
    cfg = json.loads(sys.argv[2]) if len(sys.argv) > 2 else {}
    s, names = build(cfg)
    open(out, "w").write(s)
    if names: json.dump(names, open(out + ".ts.json", "w"))
    print(out, len(s), "bytes", len(s.splitlines()), "lines")
```

```python
import sys, math, struct

NAME = "interleave_layers__gqa_block_cached__gqa_block_cached__decode"

DEFAULT = dict(
    CSTR=8192, TSTR=131072,
    ROT=0,
    NH=(6, 5),
    XH3=0,
    STAG=24,
    KVPOL="nt", WPOL="",
    MV0=6, MV0A=3,
    KP=(0, 2, 0, 0),
    PRE_Q=(0, 0, 0),
    TS=False,
    SPIN=200000, SPINL=4000000,
    SLEEP=1,
    DEPTH=2,
    MPOLL=1, TSP=0, SOLO=0,
    MLX=1,
    XPL=1,
    OPL=1,
    TSL=-1,
)

S_KA, S_VA, S_KB, S_VB = 4, 8, 12, 16
S_WQA, S_WOA, S_WQB, S_WOB = 20, 24, 28, 32
S_WS, S_DBG, S_X, S_OUT = 36, 40, 44, 48
sWV, sHKV, sG, sI = 52, 53, 54, 55
sRING, sTOFF, sWOOFF, sWQOFF = 56, 57, 58, 59
sGB, sOPRD, sMLRD, sXPWR = 60, 61, 62, 63
sQRD, sSPIN, sC, sT = 64, 65, 68, 69
sM56 = 66
sMC2 = 70
sT2, sT3, sROT, sQWR = 72, 73, 74, 75
sOPWR, sMLWR, sBB, sT4 = 76, 77, 78, 79
sTS = 80
sWQ, sSPINL, sFLO, sFLP = 82, 83, 84, 85
sANY = 90
sCNT = 91
sLO, sHI, sNQ, sPB = 86, 87, 88, 89
vTS = 0
vLANE = 1
vDVO = 2
vAL = 6
vX = 14
vT = 30
vQ = 32
vS = 64
vST = 128
L_WO = 65536
L_WQ = L_WO + 32768
L_OBUF = L_WQ + 28672
L_MLBUF = L_OBUF + 4*2048
L_FLAG = L_MLBUF + 64
L_STG = L_FLAG + 16
L_WFL = L_STG + 8
L_RBUF = L_MLBUF + 256
L_RBUF2 = L_RBUF + 1024
L_XN = L_RBUF2 + 1024
L_QBUF = L_XN + 8192
L_END = L_QBUF + 2048
GSZ = 0x180000
HSZ = 0x30000
W_ML = 0x20000
W_XP = 0x21000
W_Q = 0x25000
W_Q0 = 0x300000
W_TS_ABS = 0x340000
WS_SIZE = 0x400000
OOB = 0x80000000

def vr(a, n=1):
    return f"v{a}" if n == 1 else f"v[{a}:{a+n-1}]"
def f32(x):
    return "0x%08x" % struct.unpack("<I", struct.pack("<f", x))[0]

class Home:
    def __init__(self, kind, base): self.kind, self.base = kind, base
    def r(self, j): return f"{self.kind}[{self.base+4*j}:{self.base+4*j+3}]"
HOMES = [Home('a', 32*k) for k in range(8)] + [Home('v', 160+32*k) for k in range(3)]

class G:
    def __init__(self, cfg):
        self.c = cfg
        self.L = []
        self.vm = []
        self.free = list(range(cfg['DEPTH']))
        self.q = []
        self.slot = {}
        self.mode = None
        self.nlab = 0
        self.nts = 0
        self.tsnames = []
        self.nsync = 0
        self.klimit = None
    def e(self, s):
        for ln in s.split("\n"):
            ln = ln.strip()
            if ln: self.L.append("    " + ln if not ln.endswith(":") else ln)
    def cmt(self, s): self.L.append("    ; " + s)
    def lab(self, p):
        self.nlab += 1
        return f"L{p}_{self.nlab}"
    def nop(self, n):
        while n > 0:
            k = min(n, 8); self.e(f"s_nop {k-1}"); n -= k
    def vmem(self, s, tok=None):
        self.e(s); self.vm.append(tok)
    def wait_tok(self, tok):
        idx = None
        for k in range(len(self.vm)-1, -1, -1):
            if self.vm[k] == tok: idx = k; break
        if idx is None: return
        n = len(self.vm) - 1 - idx
        self.e(f"s_waitcnt vmcnt({min(n,63)})")
        self.vm = self.vm[idx+1:]
    def wait_all(self):
        self.e("s_waitcnt vmcnt(0)"); self.vm = []
    def lg(self, n=0): self.e(f"s_waitcnt lgkmcnt({n})")
    def tskeep(self, name):
        L = self.c['TSP'] - 1
        return name in ("start", "end") or name.startswith("V") or f"_{L}" in name or name.startswith((f"q{L+1}", f"OP{L}", f"XP{L}", f"Q{L+1}", f"q{L} ready"))
    def ts(self, name, fine=False):
        if not self.c['TS']: return
        L = self.c['TSL']
        if L >= 0:
            pre = []
            for M in (L-1, L):
                pre += [f"V{M} ", f"OP{M} ", f"S1_{M}", f"S2_{M}", f"Q{M+1}", f"XP{M}", f"q{M+1} "]
            keep = (fine and name[0] in "kv") or name in ("start", "end") or name.startswith(tuple(pre)) or name.startswith(f"q{L} ")
            if not keep: return
        elif self.c['TSP']:
            if not self.tskeep(name): return
        elif fine: return
        assert self.nts < 64
        self.e(f"s_waitcnt lgkmcnt(0)\ns_memrealtime s[{sTS}:{sTS+1}]\ns_waitcnt lgkmcnt(0)\nv_writelane_b32 v{vTS}, s{sTS}, {self.nts}")
        self.tsnames.append(name); self.nts += 1
    def pair_sync(self):
        self.nsync += 1
        k = self.nsync
        lp, ld = self.lab("ps"), self.lab("pd")
        self.e(f"""s_waitcnt lgkmcnt(0)
                   v_mov_b32 v{vT}, s{sFLO}
                   v_mov_b32 v{vT+1}, {k}
                   ds_write_b32 v{vT}, v{vT+1}
                   v_mov_b32 v{vT}, s{sFLP}
                   {lp}:
                   ds_read_b32 v{vT+1}, v{vT}
                   s_waitcnt lgkmcnt(0)
                   v_cmp_gt_u32 vcc, {k}, v{vT+1}
                   s_cbranch_vccz {ld}
                   s_cmp_eq_u32 s{sSPINL}, 0
                   s_cbranch_scc1 {ld}
                   s_sub_u32 s{sSPINL}, s{sSPINL}, 1
                   s_branch {lp}
                   {ld}:""")
    def pump(self, n=99):
        while self.free and self.q and n > 0:
            it = self.q[0]
            if it[0] == 'K' and self.klimit is not None and it[1] == self.klimit[0]:
                if self.klimit[1] <= 0: break
                self.klimit[1] -= 1
            self.q.pop(0); sl = self.free.pop(0)
            self.slot[it] = sl
            self.issue(it, sl); n -= 1
    def allow(self, n):
        if self.klimit is not None: self.klimit[1] += n
        self.pump()
    def release(self, it, pump=True):
        self.free.append(self.slot.pop(it))
        if pump: self.pump()
    def issue(self, it, sl):
        kind, l = it[0], it[1]
        c = self.c
        if kind in ('K', 'V'):
            t = it[2]
            srd = {('K',0):S_KA, ('V',0):S_VA, ('K',1):S_KB, ('V',1):S_VB}[(kind, l & 1)]
            self.e(f"s_add_u32 m0, s{sRING}, {sl*8192}")
            if c['ROT']:
                self.e(f"s_add_u32 s{sT}, s{sROT}, {t*c['TSTR']}\ns_and_b32 s{sT}, s{sT}, {16*c['TSTR']-1}\ns_add_u32 s{sT}, s{sT}, s{sTOFF}")
            else:
                self.e(f"s_add_u32 s{sT}, s{sTOFF}, {t*c['TSTR']}")
            for half in range(2):
                if half:
                    self.e(f"s_add_u32 m0, s{sRING}, {sl*8192+4096}\ns_add_u32 s{sT}, s{sT}, 4096")
                for k in range(4):
                    self.vmem(f"buffer_load_dwordx4 v{vDVO+k}, s[{srd}:{srd+3}], s{sT} offen offset:{k*1024} {c['KVPOL']} lds", it)
        else:
            raise AssertionError(it)
    def setmode(self, m):
        if self.mode == m: return
        self.mode = m
        a, t, u = vAL, vAL+1, vAL+2
        if m == 'K':
            self.e(f"""v_and_b32 v{t}, 15, v{vLANE}
                       v_lshlrev_b32 v{a}, 9, v{t}
                       v_and_b32 v{t}, 7, v{t}
                       v_lshl_add_u32 v{a}, v{t}, 5, v{a}
                       v_lshrrev_b32 v{t}, 5, v{vLANE}
                       v_lshl_add_u32 v{a}, v{t}, 8, v{a}
                       v_bfe_u32 v{t}, v{vLANE}, 4, 1
                       v_lshl_add_u32 v{a}, v{t}, 4, v{a}
                       v_add_u32 v{a}, s{sRING}, v{a}""")
        else:
            self.e(f"""v_lshrrev_b32 v{t}, 2, v{vLANE}
                       v_lshlrev_b32 v{a}, 9, v{t}
                       v_and_b32 v{t}, 7, v{t}
                       v_lshl_add_u32 v{a}, v{t}, 5, v{a}
                       v_and_b32 v{t}, 3, v{vLANE}
                       v_lshl_add_u32 v{a}, v{t}, 3, v{a}
                       v_add_u32 v{a}, s{sRING}, v{a}""")
        for j in range(1, 8): self.e(f"v_xor_b32 v{vAL+j}, {j*32}, v{a}")
    def k_read(self, it, dst):
        self.setmode('K')
        self.wait_tok(it)
        sl = self.slot[it]
        for j in range(8):
            self.e(f"ds_read_b128 {dst(j)}, v{vAL+j} offset:{sl*8192}")
    def k_move(self, it, home):
        self.cmt(f"move {it} -> home {home.kind}{home.base}")
        self.k_read(it, home.r)
        self.lg(0)
        self.release(it)
    def k_mfma(self, t, src, waits):
        for j in range(8):
            if waits: self.lg(7-j)
            cc = "0" if j == 0 else vr(vS+4*t, 4)
            self.e(f"v_mfma_f32_16x16x32_bf16 {vr(vS+4*t,4)}, {src(j)}, {vr(vQ+4*j,4)}, {cc}")
    def k_ring(self, it, t, home=None):
        self.cmt(f"consume {it}")
        src = home.r if home else (lambda j: vr(vST+4*j, 4))
        self.k_read(it, src)
        self.k_mfma(t, src, True)
        self.release(it)
    def v_ring(self, it, u):
        self.cmt(f"consume {it}")
        self.setmode('V')
        self.wait_tok(it)
        sl = self.slot[it]
        def rd(tp):
            self.e(f"ds_read_b64_tr_b16 {vr(vST+2*tp,2)}, v{vAL+(tp&7)} offset:{sl*8192+(tp>>3)*256}")
        for tp in range(8): rd(tp)
        for tp in range(16):
            if tp < 8:
                rd(8+tp); self.lg(8)
            else:
                self.lg(15-tp)
            cc = "0" if u == 0 else vr(vS+4*tp, 4)
            self.e(f"v_mfma_f32_16x16x16_bf16 {vr(vS+4*tp,4)}, {vr(vST+2*tp,2)}, {vr(vQ+2*u,2)}, {cc}")
        self.release(it)
    def xrow_reduce(self, vs, tmps, op):
        for sw in ("v_permlane32_swap_b32", "v_permlane16_swap_b32"):
            for v, t in zip(vs, tmps): self.e(f"v_mov_b32 v{t}, v{v}")
            self.nop(2 if len(vs) == 1 else 1)
            for v, t in zip(vs, tmps): self.e(f"{sw} v{t}, v{v}")
            self.nop(2 if len(vs) == 1 else 1)
            for v, t in zip(vs, tmps): self.e(f"{op} v{v}, v{v}, v{t}")
    def dpp_reduce(self, vs, op, pats):
        for p in pats:
            self.nop(max(0, 3 - len(vs)))
            for v in vs:
                self.e(f"{op}_dpp v{v}, v{v}, v{v} {p} row_mask:0xf bank_mask:0xf")
    def wave_sum(self, vs, tmps):
        self.dpp_reduce(vs, "v_add_f32", [f"row_ror:{r}" for r in (8, 4, 2, 1)])
        self.nop(1)
        self.xrow_reduce(vs, tmps, "v_add_f32")
    def poll(self, issue, check, name, after=None):
        lp, ld = self.lab("poll"+name), self.lab("done"+name)
        issue()
        if after: after()
        self.wait_tok('poll')
        check()
        self.e(f"s_cbranch_vccz {ld}")
        saved = list(self.vm)
        self.e(f"{lp}:")
        self.e(f"s_cmp_eq_u32 s{sSPIN}, 0\ns_cbranch_scc1 {ld}\ns_sub_u32 s{sSPIN}, s{sSPIN}, 1\ns_sleep {self.c['SLEEP']}")
        issue()
        self.e("s_waitcnt vmcnt(0)")
        check()
        self.e(f"s_cbranch_vccnz {lp}")
        self.e(f"{ld}:")
        self.vm = saved
    def mpoll(self, parts, name, after=None):
        if not self.c['MPOLL']:
            regs = [r for p in parts for r in p[0]]
            def issue():
                for p in parts: p[1]()
            return self.poll(issue, lambda: self.check_sent(regs, vT+1), name, after)
        lp, ld = self.lab("poll"+name), self.lab("done"+name)
        for p in parts: p[1]()
        if self.c['TSP']: self.ts(name + " iss", True)
        if after: after()
        self.wait_tok('poll')
        if self.c['TSP']:
            self.ts(name + " 1st", True)
            self.e(f"s_mov_b32 s{sCNT}, 0")
        saved = list(self.vm)
        self.e(f"{lp}:")
        if len(parts) > 1: self.e(f"s_mov_b32 s{sANY}, 0")
        for k, (regs, issue) in enumerate(parts):
            sk = self.lab("sk"+name) if len(parts) > 1 else ld
            self.check_sent(regs, vT+1)
            self.e(f"s_cbranch_vccz {sk}\ns_mov_b64 exec, vcc")
            issue()
            self.e("s_mov_b64 exec, -1")
            if len(parts) > 1: self.e(f"s_mov_b32 s{sANY}, 1\n{sk}:")
        if len(parts) > 1: self.e(f"s_cmp_eq_u32 s{sANY}, 0\ns_cbranch_scc1 {ld}")
        self.e(f"s_waitcnt vmcnt(0)\ns_cmp_eq_u32 s{sSPIN}, 0\ns_cbranch_scc1 {ld}\ns_sub_u32 s{sSPIN}, s{sSPIN}, 1")
        if self.c['SLEEP']: self.e(f"s_sleep {self.c['SLEEP']}")
        if self.c['TSP']: self.e(f"s_add_u32 s{sCNT}, s{sCNT}, 1")
        self.e(f"s_branch {lp}")
        self.e(f"{ld}:")
        if self.c['TSP'] and self.tskeep(name):
            self.e(f"v_writelane_b32 v{vTS}, s{sCNT}, {self.nts}")
            self.tsnames.append(name + " cnt"); self.nts += 1
        self.vm = saved
    def check_sent(self, regs, t):
        regs = list(regs)
        self.e(f"v_max3_u32 v{t}, v{regs[0]}, v{regs[1]}, v{regs[2]}")
        k = 3
        while k < len(regs):
            if k+1 < len(regs):
                self.e(f"v_max3_u32 v{t}, v{t}, v{regs[k]}, v{regs[k+1]}"); k += 2
            else:
                self.e(f"v_max_u32 v{t}, v{t}, v{regs[k]}"); k += 1
        self.e(f"v_cmp_eq_u32 vcc, -1, v{t}")

P8 = ["quad_perm:[1,0,3,2]", "quad_perm:[2,3,0,1]", "row_half_mirror"]

def build(cfg=None):
    c = dict(DEFAULT); c.update(cfg or {})
    g = G(c); e = g.e
    NH = c['NH']
    homeA = HOMES[:NH[0]]; homeB = HOMES[NH[0]:NH[0]+NH[1]]
    assert len(homeB) == NH[1]
    plan = {}
    for l in range(4):
        hm = homeA if l % 2 == 0 else homeB
        p = []
        for t in range(16):
            if t < len(hm): p.append((hm[t], l < 2))
            else: p.append((None, True))
        if l == 3:
            for k in range(min(c['XH3'], len(homeA))):
                t = len(hm) + k
                if t < 16: p[t] = (homeA[k], True)
        plan[l] = p

    e(f"s_cmp_ge_u32 s2, 256\ns_cbranch_scc1 Lend")
    e("s_load_dwordx16 s[72:87], s[0:1], 0\ns_load_dwordx8 s[88:95], s[0:1], 64\ns_load_dwordx2 s[96:97], s[0:1], 96")
    e(f"v_lshrrev_b32 v{vT}, 6, v0\nv_and_b32 v{vLANE}, 63, v0\ns_nop 1\nv_readfirstlane_b32 s{sWV}, v{vT}")
    e(f"s_and_b32 s{sHKV}, s2, 7\ns_lshr_b32 s{sI}, s2, 3\ns_lshr_b32 s{sG}, s{sWV}, 1")
    e(f"s_mov_b32 s{sSPIN}, {c['SPIN']}\ns_mov_b32 s{sC}, {f32(0.0625*math.log2(math.e))}")
    e(f"s_mov_b32 s{sM56}, -1\ns_mov_b32 s{sM56+1}, 0x00ffffff\ns_mov_b32 s{sMC2}, 0x00030003\ns_mov_b32 s{sMC2+1}, 0x00030003")
    e(f"""v_lshrrev_b32 v{vT}, 5, v{vLANE}
          v_and_b32 v{vT+1}, 31, v{vLANE}
          v_lshlrev_b32 v{vDVO+1}, 1, v{vT}
          v_xor_b32 v{vT+1}, v{vT+1}, v{vDVO+1}
          v_lshlrev_b32 v{vT+1}, 4, v{vT+1}
          v_lshl_add_u32 v{vDVO}, v{vT}, 9, v{vT+1}
          v_xor_b32 v{vDVO+1}, 64, v{vDVO}
          v_xor_b32 v{vDVO+2}, 0x80, v{vDVO}
          v_xor_b32 v{vDVO+3}, 0xc0, v{vDVO}""")
    assert c['DEPTH'] <= 2
    e(f"s_mul_i32 s{sRING}, s{sWV}, {c['DEPTH']*8192}")
    e(f"v_mov_b32 v{vTS}, 0")
    e(f"v_and_b32 v{vT}, 7, v{vLANE}\nv_lshlrev_b32 v{vT}, 2, v{vT}\nv_add_u32 v{vT}, {L_FLAG}, v{vT}\nds_write_b32 v{vT}, v{vTS}")
    e("s_waitcnt lgkmcnt(0)\ns_barrier")
    e(f"s_lshr_b32 s3, s{sI}, 3\ns_lshl_b32 s{sT}, s{sG}, 2\ns_add_u32 s{sT}, s{sT}, s3")
    e(f"s_lshl_b32 s{sT}, s{sT}, 3\ns_add_u32 s{sT}, s{sT}, s{sHKV}\ns_lshl_b32 s3, s{sT}, 21")
    def srd(dst, src, size, addoff=False):
        if addoff:
            e(f"s_add_u32 s{dst}, s{src}, s3\ns_addc_u32 s{dst+1}, s{src+1}, 0\ns_and_b32 s{dst+1}, s{dst+1}, 0xffff")
        else:
            e(f"s_mov_b32 s{dst}, s{src}\ns_and_b32 s{dst+1}, s{src+1}, 0xffff")
        e(f"s_mov_b32 s{dst+2}, {size}\ns_mov_b32 s{dst+3}, 0x00020000")
    srd(S_KA, 74, 1 << 21, True); srd(S_VA, 76, 1 << 21, True)
    srd(S_KB, 84, 1 << 21, True); srd(S_VB, 86, 1 << 21, True)
    srd(S_WQA, 78, 448*4096*2); srd(S_WOA, 80, 448*4096*2)
    srd(S_WQB, 88, 448*4096*2); srd(S_WOB, 90, 448*4096*2)
    srd(S_WS, 96, WS_SIZE); srd(S_DBG, 94, 256); srd(S_X, 72, 7168); srd(S_OUT, 92, 7168)
    e(f"s_lshr_b32 s{sBB}, s{sI}, 3\ns_and_b32 s{sWQ}, s{sWV}, 1\ns_mov_b32 s{sSPINL}, {c['SPINL']}")
    e(f"s_lshl_b32 s{sFLO}, s{sWV}, 2\ns_add_u32 s{sFLO}, s{sFLO}, {L_FLAG}\ns_xor_b32 s{sFLP}, s{sFLO}, 4")
    e(f"s_mov_b32 s{sLO}, 0x00003f80\ns_mov_b32 s{sHI}, 0x3f800000\ns_min_u32 s{sNQ}, s{sI}, 27")
    assert L_FLAG % 8 == 0
    e(f"s_and_b32 s{sT}, s{sI}, 7\ns_lshl_b32 s{sT}, s{sT}, 1\ns_add_u32 s{sT}, s{sT}, s{sWQ}\ns_mul_i32 s{sTOFF}, s{sT}, {c['CSTR']}")
    if c['ROT']:
        e(f"s_lshr_b32 s{sT}, s2, 3\ns_add_u32 s{sT}, s{sT}, s{sHKV}\ns_mul_i32 s{sT}, s{sT}, {c['ROT']}\ns_and_b32 s{sT}, s{sT}, 15\ns_mul_i32 s{sROT}, s{sT}, {c['TSTR']}")
    e(f"s_lshl_b32 s{sT}, s{sHKV}, 1\ns_add_u32 s{sT}, s{sT}, s{sWQ}\ns_mul_i32 s{sWOOFF}, s{sT}, {256*896}\ns_lshl_b32 s{sT}, s{sNQ}, 5\ns_add_u32 s{sWOOFF}, s{sWOOFF}, s{sT}")
    e(f"s_mul_i32 s{sWQOFF}, s{sWQ}, {224*8192}\ns_lshl_b32 s{sT}, s{sHKV}, 10\ns_add_u32 s{sWQOFF}, s{sWQOFF}, s{sT}\ns_lshl_b32 s{sT}, s{sI}, 5\ns_add_u32 s{sWQOFF}, s{sWQOFF}, s{sT}")
    e(f"s_mul_i32 s{sGB}, s{sG}, {GSZ}")
    e(f"s_mul_i32 s{sT}, s{sHKV}, {HSZ}\ns_add_u32 s{sOPRD}, s{sGB}, s{sT}")
    if c['OPL'] == 0:
        e(f"s_lshr_b32 s{sT}, s{sI}, 4\ns_lshl_b32 s{sT}, s{sT}, 13\ns_add_u32 s{sOPWR}, s{sOPRD}, s{sT}\ns_and_b32 s{sT}, s{sI}, 15\ns_lshl_b32 s{sT}, s{sT}, 6\ns_add_u32 s{sOPWR}, s{sOPWR}, s{sT}")
        e(f"s_lshl_b32 s{sT}, s{sWQ}, 14\ns_add_u32 s{sOPWR}, s{sOPWR}, s{sT}")
    else:
        e(f"s_lshl_b32 s{sT}, s{sI}, 9\ns_add_u32 s{sOPWR}, s{sOPRD}, s{sT}\ns_lshl_b32 s{sT}, s{sWQ}, 14\ns_add_u32 s{sOPWR}, s{sOPWR}, s{sT}")
    MLS = 8192 if c['MLX'] else 512
    if c['MLX']:
        e(f"s_add_u32 s{sMLRD}, s{sOPRD}, {0x28000}\ns_lshl_b32 s{sT}, s{sWQ}, 7\ns_add_u32 s{sMLRD}, s{sMLRD}, s{sT}")
        e(f"s_lshl_b32 s{sT}, s{sI}, 8\ns_add_u32 s{sMLWR}, s{sMLRD}, s{sT}")
    else:
        e(f"s_add_u32 s{sMLRD}, s{sOPRD}, {W_ML}\ns_lshl_b32 s{sT}, s{sWQ}, 3\ns_add_u32 s{sMLRD}, s{sMLRD}, s{sT}")
        e(f"s_lshl_b32 s{sT}, s{sI}, 4\ns_add_u32 s{sMLWR}, s{sMLRD}, s{sT}")
    e(f"s_lshl_b32 s{sT}, s{sNQ}, {7 if c['XPL'] else 5}\ns_add_u32 s{sXPWR}, s{sOPRD}, s{sT}\ns_add_u32 s{sXPWR}, s{sXPWR}, {W_XP}")
    if c['XPL']: e(f"s_lshl_b32 s{sQRD}, s{sBB}, 5\ns_lshl_b32 s{sQWR}, s{sI}, 7")
    else:        e(f"s_lshl_b32 s{sQRD}, s{sBB}, 10\ns_lshl_b32 s{sQWR}, s{sI}, 5")
    def qbase(l, dst, rel):
        if l == 0:
            e(f"s_lshl_b32 s{dst}, s{sG}, 3\ns_add_u32 s{dst}, s{dst}, s{sHKV}\ns_lshl_b32 s{dst}, s{dst}, 12\ns_add_u32 s{dst}, s{dst}, {W_Q0}\ns_add_u32 s{dst}, s{dst}, s{rel}")
        else:
            e(f"s_add_u32 s{dst}, s{sOPRD}, {W_Q+(l-1)*4096}\ns_add_u32 s{dst}, s{dst}, s{rel}")

    Q = []
    for l in range(4):
        for t in range(16):
            if plan[l][t][1]: Q.append(('K', l, t))
        for t in range(16): Q.append(('V', l, t))
    g.q = Q

    g.ts("start")
    def xoff(dst):
        e(f"s_lshl_b32 s{dst}, s{sG}, 1\ns_add_u32 s{dst}, s{dst}, s{sWQ}\ns_mul_i32 s{dst}, s{dst}, 1792")
    xoff(sT)
    e(f"v_lshlrev_b32 v{vT}, 4, v{vLANE}\nv_mov_b32 v{vT+1}, {OOB}\nv_cndmask_b32 v{vT}, v{vT+1}, v{vT}, s[{sM56}:{sM56+1}]")
    g.vmem(f"buffer_load_dwordx4 {vr(vST,4)}, v{vT}, s[{S_X}:{S_X+3}], s{sT} offen", 'x')
    g.vmem(f"buffer_load_dwordx4 {vr(vST+4,4)}, v{vT}, s[{S_X}:{S_X+3}], s{sT} offen offset:896", 'x')
    def w_voff(kind, dst, tmp):
        if kind == 'WO': e(f"v_lshrrev_b32 v{dst}, 1, v{vLANE}\nv_mul_u32_u24 v{dst}, 896, v{dst}")
        else:            e(f"v_lshrrev_b32 v{dst}, 1, v{vLANE}\nv_lshlrev_b32 v{dst}, 13, v{dst}")
        e(f"v_and_b32 v{tmp}, 1, v{vLANE}\nv_lshl_add_u32 v{dst}, v{tmp}, 4, v{dst}")
    def w_load(kind, p, va, tok):
        srd = {('WO',0):S_WOA, ('WO',1):S_WOB, ('WQ',0):S_WQA, ('WQ',1):S_WQB}[(kind, p)]
        n, step, base = (8, 32*896, sWOOFF) if kind == 'WO' else (7, 32*8192, sWQOFF)
        lb, hs = (L_WO + p*16384, 8192) if kind == 'WO' else (L_WQ + p*14336, 7168)
        e(f"s_mul_i32 s{sT2}, s{sWQ}, {hs}\ns_add_u32 s{sT2}, s{sT2}, {lb}")
        for k in range(n):
            e(f"s_add_u32 m0, s{sT2}, {k*1024}\ns_add_u32 s{sT}, s{base}, {k*step}")
            g.vmem(f"buffer_load_dwordx4 v{va}, s[{srd}:{srd+3}], s{sT} offen {c['WPOL']} lds", tok)
    w_voff('WQ', vT, vT+1)
    e(f"s_mul_i32 s{sT2}, s{sWQ}, 7168\ns_add_u32 s{sT2}, s{sT2}, {L_WQ}")
    for k in range(4):
        e(f"""s_lshl_b32 s{sT3}, s{sG}, 2
              s_add_u32 s{sT3}, s{sT3}, {k}
              s_min_u32 s{sT3}, s{sT3}, 6
              s_lshl_b32 s{sT}, s{sT3}, 10
              s_add_u32 m0, s{sT2}, s{sT}
              s_lshl_b32 s{sT}, s{sT3}, 18
              s_add_u32 s{sT}, s{sT}, s{sWQOFF}""")
        g.vmem(f"buffer_load_dwordx4 v{vT}, s[{S_WQA}:{S_WQA+3}], s{sT} offen {c['WPOL']} lds", 'wqa')
    e(f"s_mul_i32 s{sT}, s{sI}, 6144\ns_add_u32 s{sT}, s{sT}, s{sOPRD}\ns_lshl_b32 s{sT2}, s{sWQ}, 10\ns_add_u32 s{sT}, s{sT}, s{sT2}")
    e(f"v_lshlrev_b32 v{vT}, 4, v{vLANE}")
    for k in range(4): e(f"v_mov_b32 v{vST+8+k}, -1")
    for k in range(3):
        g.vmem(f"buffer_store_dwordx4 {vr(vST+8,4)}, v{vT}, s[{S_WS}:{S_WS+3}], s{sT} offen offset:{k*2048 if k < 2 else 0} sc1" if k < 2 else
               f"buffer_store_dwordx4 {vr(vST+8,4)}, v{vT}, s[{S_WS}:{S_WS+3}], s{sT2} offen sc1", 'fill')
        if k == 1: e(f"s_add_u32 s{sT2}, s{sT}, 4096")
    g.pump()
    g.wait_tok('x')
    for k in range(8):
        e(f"v_lshlrev_b32 v{vX+2*k}, 16, v{vST+k}\nv_and_b32 v{vX+2*k+1}, 0xffff0000, v{vST+k}")

    WOF = 64
    WQF = 96
    def read_w(kind, p, dst, t0, t1):
        g.cmt(f"read {kind}{p} fragments")
        nst = 8 if kind == 'WO' else 7
        lb, hs = (L_WO + p*16384, 8192) if kind == 'WO' else (L_WQ + p*14336, 7168)
        e(f"""v_lshrrev_b32 v{t0}, 4, v{vLANE}
              v_lshlrev_b32 v{t0}, 8, v{t0}
              v_bfe_u32 v{t1}, v{vLANE}, 2, 2
              v_lshl_add_u32 v{t0}, v{t1}, 5, v{t0}
              v_and_b32 v{t1}, 3, v{vLANE}
              v_lshl_add_u32 v{t0}, v{t1}, 3, v{t0}
              s_mul_i32 s{sT}, s{sWQ}, {hs}
              s_add_u32 s{sT}, s{sT}, {lb}
              v_add_u32 v{t0}, s{sT}, v{t0}""")
        n = 0
        for st in range(nst):
            for hf in range(2):
                e(f"ds_read_b64_tr_b16 {vr(dst+4*st+2*hf,2)}, v{t0} offset:{st*1024+hf*128}")
                n += 1
                if n == 8: g.lg(4)
        g.lg(0)
    def lds_wait(addr_code, val):
        lp, ld = g.lab("lw"), g.lab("lwd")
        addr_code()
        e(f"""{lp}:
              ds_read_b32 v{vT+1}, v{vT}
              s_waitcnt lgkmcnt(0)
              v_cmp_gt_u32 vcc, {val}, v{vT+1}
              s_cbranch_vccz {ld}
              s_cmp_eq_u32 s{sSPINL}, 0
              s_cbranch_scc1 {ld}
              s_sub_u32 s{sSPINL}, s{sSPINL}, 1
              s_sleep 2
              s_branch {lp}
              {ld}:""")

    def reduce_store(rbuf, voff_code, soff, tok, extra_cond=None):
        R = 64
        t = vT
        e(f"""s_lshl_b32 s{sT}, s{sG}, 9
              s_add_u32 s{sT}, s{sT}, {rbuf}
              v_and_b32 v{t}, 7, v{vLANE}
              v_lshlrev_b32 v{t}, 5, v{t}
              v_add_u32 v{t}, s{sT}, v{t}""")
        for w in range(2):
            e(f"ds_read_b128 {vr(R+8*w,4)}, v{t} offset:{w*256}\nds_read_b128 {vr(R+8*w+4,4)}, v{t} offset:{w*256+16}")
        voff_code(t+1, R+16)
        e(f"s_cmp_eq_u32 s{sWQ}, 0\ns_cselect_b32 s{sT}, 8, 0")
        if extra_cond: extra_cond()
        e(f"""v_cmp_gt_u32 vcc, s{sT}, v{vLANE}
              v_mov_b32 v{R+16}, {OOB}
              s_nop 0
              v_cndmask_b32 v{t+1}, v{R+16}, v{t+1}, vcc""")
        g.lg(0)
        for k in range(8): e(f"v_add_f32 v{R+k}, v{R+k}, v{R+8+k}")
        for k in range(4): e(f"v_cvt_pk_bf16_f32 v{R+8+k}, v{R+2*k}, v{R+2*k+1}")
        for k in range(4): e(f"v_min_u32 v{R+8+k}, -2, v{R+8+k}")
        g.vmem(f"buffer_store_dwordx4 {vr(R+8,4)}, v{t+1}, s[{S_WS}:{S_WS+3}], s{soff} offen sc1", tok)

    def s2_compute(l):
        g.cmt(f"S2 compute -> Q[{l}]")
        d = 64
        t0, t1, u0, u1 = 80, 81, 82, 83
        for ee, t in ((0, t0), (1, t1)):
            x = vX + 8*ee
            e(f"v_add_f32 v{t}, v{x}, v{x+1}")
            for k in range(2, 8): e(f"v_add_f32 v{t}, v{t}, v{x+k}")
        g.wave_sum([t0, t1], [u0, u1])
        e(f"v_mul_f32 v{t0}, {f32(1.0/448)}, v{t0}\nv_mul_f32 v{t1}, {f32(1.0/448)}, v{t1}")
        for ee, t in ((0, t0), (1, t1)):
            for k in range(8): e(f"v_sub_f32 v{d+8*ee+k}, v{vX+8*ee+k}, v{t}")
        for ee, t in ((0, t0), (1, t1)):
            e(f"v_mul_f32 v{t}, v{d+8*ee}, v{d+8*ee}")
            for k in range(1, 8): e(f"v_fmac_f32 v{t}, v{d+8*ee+k}, v{d+8*ee+k}")
        e(f"v_cndmask_b32 v{t0}, 0, v{t0}, s[{sM56}:{sM56+1}]\nv_cndmask_b32 v{t1}, 0, v{t1}, s[{sM56}:{sM56+1}]")
        g.wave_sum([t0, t1], [u0, u1])
        e(f"""v_mov_b32 v{u0}, {f32(1e-5)}
              v_mov_b32 v{u1}, {f32(1e-5)}
              v_fmac_f32 v{u0}, {f32(1.0/448)}, v{t0}
              v_fmac_f32 v{u1}, {f32(1.0/448)}, v{t1}
              v_rsq_f32 v{u0}, v{u0}
              v_rsq_f32 v{u1}, v{u1}
              s_nop 0""")
        for ee, u in ((0, u0), (1, u1)):
            for k in range(8): e(f"v_mul_f32 v{d+8*ee+k}, v{d+8*ee+k}, v{u}")
        pk = 84
        for ee in range(2):
            for k in range(4): e(f"v_cvt_pk_bf16_f32 v{pk+4*ee+k}, v{d+8*ee+2*k}, v{d+8*ee+2*k+1}")
        e(f"""s_lshl_b32 s{sT}, s{sWV}, 11
              s_add_u32 s{sT}, s{sT}, {L_XN}
              v_lshlrev_b32 v{vT}, 4, v{vLANE}
              v_add_u32 v{vT}, s{sT}, v{vT}
              ds_write_b128 v{vT}, {vr(pk,4)}
              ds_write_b128 v{vT}, {vr(pk+4,4)} offset:1024""")
        if l == 0:
            g.wait_tok('wqa')
            g.lg(0)
            e("s_barrier")
            read_w('WQ', 0, WQF, 124, 125)
        else:
            g.pair_sync()
        e(f"""v_and_b32 v{vT}, 3, v{vLANE}
              v_lshlrev_b32 v{vT}, 10, v{vT}
              v_lshrrev_b32 v{vT+1}, 4, v{vLANE}
              v_lshl_add_u32 v{vT}, v{vT+1}, 4, v{vT}
              s_lshl_b32 s{sT}, s{sG}, 12
              s_mul_i32 s{sT2}, s{sWQ}, 448
              s_add_u32 s{sT}, s{sT}, s{sT2}
              s_add_u32 s{sT}, s{sT}, {L_XN}
              v_add_u32 v{vT}, s{sT}, v{vT}""")
        XB, D = 32, 92
        for st in range(7): e(f"ds_read_b128 {vr(XB+4*st,4)}, v{vT} offset:{st*64}")
        for st in range(7):
            g.lg(6-st)
            cc = "0" if st == 0 else vr(D, 4)
            e(f"v_mfma_f32_16x16x32_bf16 {vr(D,4)}, {vr(WQF+4*st,4)}, {vr(XB+4*st,4)}, {cc}")
        e(f"""v_and_b32 v{vT}, 3, v{vLANE}
              v_lshlrev_b32 v{vT}, 6, v{vT}
              v_lshrrev_b32 v{vT+1}, 4, v{vLANE}
              v_lshl_add_u32 v{vT}, v{vT+1}, 4, v{vT}
              s_lshl_b32 s{sT}, s{sWV}, 8
              s_add_u32 s{sT}, s{sT}, {L_RBUF2}
              v_add_u32 v{vT}, s{sT}, v{vT}""")
        g.nop(8)
        e(f"ds_write_b128 v{vT}, {vr(D,4)}")
        g.pair_sync()
        qbase(l, sT2, sQWR)
        def voff(dst, tmp):
            if c['XPL']:
                e(f"v_lshlrev_b32 v{dst}, 4, v{vLANE}"); return
            e(f"v_lshrrev_b32 v{dst}, 1, v{vLANE}\nv_lshlrev_b32 v{dst}, 10, v{dst}\nv_and_b32 v{tmp}, 1, v{vLANE}\nv_lshl_add_u32 v{dst}, v{tmp}, 4, v{dst}")
        reduce_store(L_RBUF2, voff, sT2, ('qst', l))

    def load_q(l):
        g.cmt(f"load q for layer {l}")
        qbase(l, sT2, sQRD)
        if c['XPL']:
            e(f"v_lshrrev_b32 v{vT}, 1, v{vLANE}\nv_lshlrev_b32 v{vT}, 7, v{vT}\nv_and_b32 v{vT+1}, 1, v{vLANE}\nv_lshl_add_u32 v{vT}, v{vT+1}, 4, v{vT}")
        else:
            e(f"v_lshlrev_b32 v{vT}, 4, v{vLANE}")
        R = vST
        def issue(): g.vmem(f"buffer_load_dwordx4 {vr(R,4)}, v{vT}, s[{S_WS}:{S_WS+3}], s{sT2} offen sc1", 'poll')
        if l == 0:
            issue(); g.wait_tok('poll')
        else:
            g.mpoll([(list(range(R, R+4)), issue)], f"q{l}")
        e(f"s_lshl_b32 s{sT}, s{sG}, 10\ns_add_u32 s{sT}, s{sT}, {L_QBUF}\nv_lshlrev_b32 v{vT}, 4, v{vLANE}\nv_add_u32 v{vT}, s{sT}, v{vT}\nds_write_b128 v{vT}, {vr(R,4)}")
        e(f"""v_and_b32 v{vT+1}, 1, v{vLANE}
              v_lshlrev_b32 v{vT+1}, 9, v{vT+1}
              v_bfe_u32 v{vT}, v{vLANE}, 4, 1
              v_lshl_add_u32 v{vT+1}, v{vT}, 4, v{vT+1}
              v_lshrrev_b32 v{vT}, 5, v{vLANE}
              v_lshl_add_u32 v{vT+1}, v{vT}, 8, v{vT+1}
              v_add_u32 v{vT+1}, s{sT}, v{vT+1}""")
        g.lg(0)
        for j in range(8): e(f"ds_read_b128 {vr(vQ+4*j,4)}, v{vT+1} offset:{j*32}")
        g.lg(0)

    moved = set()
    def early_moves(l, n):
        for t in range(16):
            if n <= 0: break
            hm, ld = plan[l][t]
            it = ('K', l, t)
            if hm is not None and ld and it not in moved and it in g.slot:
                g.k_move(it, hm); moved.add(it); n -= 1

    XG = list(range(32, 64)) + list(range(128, 160))
    def xp_gather(l, after=None):
        g.cmt("XP gather")
        if c['XPL']:
            e(f"""s_lshl_b32 s{sT}, s{sWQ}, 6
                  v_lshrrev_b32 v{vT}, 1, v{vLANE}
                  v_lshlrev_b32 v{vT}, 7, v{vT}
                  v_and_b32 v{vT+1}, 1, v{vLANE}
                  v_lshl_add_u32 v{vT}, v{vT+1}, 4, v{vT}""")
        else:
            e(f"""s_mul_i32 s{sT}, s{sWQ}, 1792
                  v_lshlrev_b32 v{vT}, 4, v{vLANE}""")
        e(f"""v_add_u32 v{vT}, s{sT}, v{vT}
              v_mov_b32 v{vT+1}, {OOB}
              v_cndmask_b32 v{vT}, v{vT+1}, v{vT}, s[{sM56}:{sM56+1}]
              s_add_u32 s{sT2}, s{sGB}, {W_XP + l*3584}""")
        EOFF = 32 if c['XPL'] else 896
        def part(hk):
            a = XG[8*hk]
            def issue():
                so = sT2
                if hk:
                    e(f"s_add_u32 s{sT3}, s{sT2}, {hk*HSZ}"); so = sT3
                g.vmem(f"buffer_load_dwordx4 {vr(a,4)}, v{vT}, s[{S_WS}:{S_WS+3}], s{so} offen sc1", 'poll')
                g.vmem(f"buffer_load_dwordx4 {vr(a+4,4)}, v{vT}, s[{S_WS}:{S_WS+3}], s{so} offen offset:{EOFF} sc1", 'poll')
            return (XG[8*hk:8*hk+8], issue)
        g.mpoll([part(hk) for hk in range(8)], f"s2_{l}", after)
        g.ts(f"S2_{l} got")
        for hk in range(8):
            for ee in range(2):
                for k in range(4):
                    a = XG[8*hk] + 4*ee + k
                    e(f"v_dot2c_f32_bf16 v{vX+8*ee+2*k}, s{sLO}, v{a}\nv_dot2c_f32_bf16 v{vX+8*ee+2*k+1}, s{sHI}, v{a}")

    def stag_write():
        e(f"s_lshl_b32 s{sT}, s{sG}, 2\ns_add_u32 s{sT}, s{sT}, {L_STG}\nv_mov_b32 v{vT}, s{sT}\nv_mov_b32 v{vT+1}, 1\nds_write_b32 v{vT}, v{vT+1}")

    s2_compute(0)
    g.ts("q0 stored")
    nmv = min(c['MV0'], c['MV0A'])
    early_moves(0, nmv)
    g.wait_tok(('qst', 0))
    e("s_barrier")
    e(f"""s_cmp_eq_u32 s{sWV}, 0
          s_cselect_b32 s{sT}, 1, 0
          v_cmp_gt_u32 vcc, s{sT}, v{vLANE}
          v_mov_b32 v{vT}, {OOB}
          v_mov_b32 v{vT+1}, s2
          v_cndmask_b32 v{vT}, v{vT}, v{vT+1}, vcc
          v_mov_b32 v{vT+1}, 1""")
    g.vmem(f"buffer_store_byte v{vT+1}, v{vT}, s[{S_DBG}:{S_DBG+3}], 0 offen sc1", 'flag')
    early_moves(0, c['MV0'] - nmv)
    g.ts("moves0")
    e(f"v_lshlrev_b32 v{vT}, 2, v{vLANE}")
    FR = vST
    def issue_f(): g.vmem(f"buffer_load_dword v{FR}, v{vT}, s[{S_DBG}:{S_DBG+3}], 0 offen sc1", 'poll')
    def check_f(): e(f"v_and_b32 v{FR}, 0x01010101, v{FR}\nv_cmp_ne_u32 vcc, 0x01010101, v{FR}")
    g.poll(issue_f, check_f, "init")
    g.ts("init done")
    lskip = g.lab("wskip")
    e(f"s_cmp_eq_u32 s{sG}, 0\ns_cbranch_scc1 {lskip}")
    saved = list(g.vm)
    w_voff('WO', vT, vT+1)
    w_load('WO', 0, vT, 'w'); w_load('WO', 1, vT, 'w')
    w_voff('WQ', vT, vT+1)
    w_load('WQ', 1, vT, 'w')
    e("s_waitcnt vmcnt(0)")
    e(f"s_lshl_b32 s{sT}, s{sWQ}, 2\ns_add_u32 s{sT}, s{sT}, {L_WFL}\nv_mov_b32 v{vT}, s{sT}\nv_mov_b32 v{vT+1}, 1\nds_write_b32 v{vT}, v{vT+1}")
    if c['SOLO']: e("s_branch Lfin")
    e(f"{lskip}:")
    g.vm = saved
    if c['STAG'] >= 0:
        lp, ld = g.lab("stg"), g.lab("stgd")
        e(f"""v_mov_b32 v{vT}, {L_STG}
              {lp}:
              ds_read_b32 v{vT+1}, v{vT}
              s_waitcnt lgkmcnt(0)
              v_cmp_gt_u32 vcc, s{sG}, v{vT+1}
              s_cbranch_vccz {ld}
              s_cmp_eq_u32 s{sSPINL}, 0
              s_cbranch_scc1 {ld}
              s_sub_u32 s{sSPINL}, s{sSPINL}, 1
              s_sleep 2
              s_branch {lp}
              {ld}:""")

    KP = c['KP']
    for l in range(4):
        load_q(l)
        g.ts(f"q{l} ready")
        g.klimit = None
        g.pump()
        if l < 3: g.klimit = [l+1, KP[0]]
        order = [t for t in range(16) if plan[l][t][0] is not None and (not plan[l][t][1] or ('K', l, t) in moved)]
        order += [t for t in range(16) if t not in order]
        for n, t in enumerate(order):
            hm, ld = plan[l][t]
            it = ('K', l, t)
            if hm is not None and (not ld or it in moved):
                g.cmt(f"resident K tile {t}")
                g.k_mfma(t, hm.r, False)
            else:
                g.k_ring(it, t, hm)
            if l == 0 and c['STAG'] == n: stag_write()
            if l == c['TSL']: g.ts(f"k{n}", True)
        g.ts(f"K{l} done")
        g.nop(8)
        m, t1, ls, nm = vST, vST+1, vST+2, vST+3
        e(f"v_max3_f32 v{m}, v{vS}, v{vS+1}, v{vS+2}\nv_max3_f32 v{t1}, v{vS+3}, v{vS+4}, v{vS+5}")
        k = 6
        while k < 64:
            tgt = m if ((k - 6)//2) % 2 == 0 else t1
            e(f"v_max3_f32 v{tgt}, v{tgt}, v{vS+k}, v{vS+k+1}"); k += 2
        e(f"v_max_f32 v{m}, v{m}, v{t1}")
        g.xrow_reduce([m], [t1], "v_max_f32")
        e(f"v_mul_f32 v{m}, s{sC}, v{m}\nv_mov_b32 v{ls}, 0\nv_mov_b32 v{nm}, 0")
        for t in range(16):
            b = vS + 4*t
            for r in range(4): e(f"v_fma_f32 v{b+r}, v{b+r}, s{sC}, -v{m}")
            for r in range(4): e(f"v_exp_f32 v{b+r}, v{b+r}")
            e(f"v_cvt_pk_bf16_f32 v{vQ+2*t}, v{b}, v{b+1}\nv_add_f32 v{ls}, v{ls}, v{b}\nv_add_f32 v{nm}, v{nm}, v{b+1}")
            e(f"v_cvt_pk_bf16_f32 v{vQ+2*t+1}, v{b+2}, v{b+3}\nv_add_f32 v{ls}, v{ls}, v{b+2}\nv_add_f32 v{nm}, v{nm}, v{b+3}")
        e(f"v_add_f32 v{ls}, v{ls}, v{nm}")
        g.xrow_reduce([ls], [t1], "v_add_f32")
        e(f"""v_mov_b32 v{t1}, v{ls}
              v_and_b32 v{nm}, 1, v{vLANE}
              v_lshlrev_b32 v{nm}, 3, v{nm}
              s_lshl_b32 s{sT}, s{sWV}, 4
              s_add_u32 s{sT}, s{sT}, {L_MLBUF}
              v_add_u32 v{nm}, s{sT}, v{nm}
              ds_write_b64 v{nm}, v[{m}:{m+1}]
              s_waitcnt lgkmcnt(0)""")
        g.ts(f"sm{l} done")
        for u in range(16):
            g.v_ring(('V', l, u), u)
            if l == 0 and c['STAG'] == 16 + u: stag_write()
            if l == c['TSL']: g.ts(f"v{u}", True)
        g.ts(f"V{l} done")
        e(f"""v_and_b32 v{vT}, 1, v{vLANE}
              v_lshlrev_b32 v{vT}, 10, v{vT}
              v_lshrrev_b32 v{vT+1}, 4, v{vLANE}
              v_lshl_add_u32 v{vT}, v{vT+1}, 4, v{vT}
              s_lshl_b32 s{sT}, s{sWV}, 11
              s_add_u32 s{sT}, s{sT}, {L_OBUF}
              v_add_u32 v{vT}, s{sT}, v{vT}""")
        g.nop(8)
        e(f"s_mov_b64 exec, s[{sMC2}:{sMC2+1}]")
        for tp in range(16):
            e(f"ds_write_b128 v{vT}, {vr(vS+4*tp,4)} offset:{tp*64}")
            if tp == 11: g.lg(4)
        e("s_mov_b64 exec, -1")
        g.pair_sync()
        ML, OO, MM = 32, 40, 36
        e(f"""s_lshl_b32 s{sT}, s{sG}, 5
              s_lshl_b32 s{sT2}, s{sWQ}, 3
              s_add_u32 s{sT}, s{sT}, s{sT2}
              s_add_u32 s{sT}, s{sT}, {L_MLBUF}
              v_mov_b32 v{vT}, s{sT}
              s_lshl_b32 s{sT}, s{sG}, 12
              s_lshl_b32 s{sT2}, s{sWQ}, 10
              s_add_u32 s{sT}, s{sT}, s{sT2}
              s_add_u32 s{sT}, s{sT}, {L_OBUF}
              v_and_b32 v{vT+1}, 31, v{vLANE}
              v_lshlrev_b32 v{vT+1}, 5, v{vT+1}
              v_add_u32 v{vT+1}, s{sT}, v{vT+1}""")
        for w in range(2): e(f"ds_read_b64 {vr(ML+2*w,2)}, v{vT} offset:{w*16}")
        for w in range(2):
            e(f"ds_read_b128 {vr(OO+8*w,4)}, v{vT+1} offset:{w*2048}\nds_read_b128 {vr(OO+8*w+4,4)}, v{vT+1} offset:{w*2048+16}")
        A1, A2, A3 = 56, 57, 58
        if c['OPL'] == 0:
            e(f"""v_lshrrev_b32 v{A1}, 2, v{vLANE}
                  v_lshlrev_b32 v{A1}, 10, v{A1}
                  v_and_b32 v{A3}, 3, v{vLANE}
                  v_lshl_add_u32 v{A1}, v{A3}, 4, v{A1}""")
        else:
            e(f"v_lshlrev_b32 v{A1}, 4, v{vLANE}")
        e(f"""v_cmp_gt_u32 vcc, 32, v{vLANE}
              v_mov_b32 v{A3}, {OOB}
              s_nop 0
              v_cndmask_b32 v{A1}, v{A3}, v{A1}, vcc
              v_cmp_eq_u32 vcc, 0, v{vLANE}
              v_mov_b32 v{A2}, 0
              s_nop 0
              v_cndmask_b32 v{A2}, v{A3}, v{A2}, vcc""")
        g.lg(4)
        e(f"""v_max_f32 v{MM}, v{ML}, v{ML+2}
              v_sub_f32 v{ML}, v{ML}, v{MM}
              v_sub_f32 v{ML+2}, v{ML+2}, v{MM}
              v_exp_f32 v{ML}, v{ML}
              v_exp_f32 v{ML+2}, v{ML+2}
              s_nop 0
              v_mul_f32 v{MM+1}, v{ML}, v{ML+1}
              v_fmac_f32 v{MM+1}, v{ML+2}, v{ML+3}""")
        g.lg(0)
        for k in range(8): e(f"v_mul_f32 v{OO+k}, v{OO+k}, v{ML}")
        for k in range(8): e(f"v_fmac_f32 v{OO+k}, v{OO+8+k}, v{ML+2}")
        for k in range(4): e(f"v_cvt_pk_bf16_f32 v{OO+8+k}, v{OO+2*k}, v{OO+2*k+1}")
        for k in range(4): e(f"v_min_u32 v{OO+8+k}, -2, v{OO+8+k}")
        e(f"s_add_u32 s{sT2}, s{sOPWR}, {l*32768}\ns_add_u32 s{sT3}, s{sMLWR}, {l*MLS}")
        g.vmem(f"buffer_store_dwordx4 {vr(OO+8,4)}, v{A1}, s[{S_WS}:{S_WS+3}], s{sT2} offen sc1", 'opst')
        g.vmem(f"buffer_store_dwordx2 {vr(MM,2)}, v{A2}, s[{S_WS}:{S_WS+3}], s{sT3} offen sc1", 'mlst')
        g.ts(f"OP{l} stored")
        g.nop(2)
        VA, VB = 120, 121
        e(f"""v_and_b32 v{VA}, 15, v{vLANE}
              v_lshlrev_b32 v{VB}, {8 if c['MLX'] else 4}, v{VA}
              v_lshlrev_b32 v{VA}, {6 if c['OPL'] == 0 else 9}, v{VA}
              v_lshrrev_b32 v{vT}, 4, v{vLANE}
              v_lshl_add_u32 v{VA}, v{vT}, 4, v{VA}
              s_lshl_b32 s{sT}, s{sWQ}, 14
              s_add_u32 s{sT2}, s{sOPRD}, {l*32768}
              s_add_u32 s{sT2}, s{sT2}, s{sT}
              s_add_u32 s{sT3}, s{sMLRD}, {l*MLS}""")
        M2 = 124
        BG = [32, 128]
        def part_s1(nt):
            def issue():
                if c['MLX'] and nt:
                    e(f"s_add_u32 s{sT4}, s{sT3}, 4096")
                    g.vmem(f"buffer_load_dwordx2 {vr(M2+2*nt,2)}, v{VB}, s[{S_WS}:{S_WS+3}], s{sT4} offen sc1", 'poll')
                else:
                    g.vmem(f"buffer_load_dwordx2 {vr(M2+2*nt,2)}, v{VB}, s[{S_WS}:{S_WS+3}], s{sT3} offen offset:{256*nt} sc1", 'poll')
                for st in range(8):
                    if c['OPL'] == 0:
                        if (nt, st) == (0, 0): so = sT2
                        elif st % 4 == 0:
                            e(f"s_add_u32 s{sT4}, s{sT2}, {nt*8192 + st*1024}"); so = sT4
                        off = (st%4)*1024
                    else:
                        if nt == 0: so = sT2
                        elif st == 0:
                            e(f"s_add_u32 s{sT4}, s{sT2}, 8192"); so = sT4
                        off = st*64
                    g.vmem(f"buffer_load_dwordx4 {vr(BG[nt]+4*st,4)}, v{VA}, s[{S_WS}:{S_WS+3}], s{so} offen offset:{off} sc1", 'poll')
            return ([M2+2*nt, M2+2*nt+1] + list(range(BG[nt], BG[nt]+32)), issue)
        def after_s1():
            if l == 0:
                lds_wait(lambda: e(f"s_lshl_b32 s{sT}, s{sWQ}, 2\ns_add_u32 s{sT}, s{sT}, {L_WFL}\nv_mov_b32 v{vT}, s{sT}"), 1)
            if l < 3: g.allow(KP[1])
            read_w('WO', l & 1, WOF, 122, 123)
        g.mpoll([part_s1(0), part_s1(1)], f"s1_{l}", after_s1)
        g.ts(f"S1_{l} got")
        D = 96
        for st in range(8):
            for nt in range(2):
                cc = "0" if st == 0 else vr(D+4*nt, 4)
                e(f"v_mfma_f32_16x16x32_bf16 {vr(D+4*nt,4)}, {vr(WOF+4*st,4)}, {vr(BG[nt]+4*st,4)}, {cc}")
        a0, a1, b0, b1 = 104, 105, 106, 107
        e(f"v_mov_b32 v{a0}, v{M2}\nv_mov_b32 v{a1}, v{M2+2}")
        g.dpp_reduce([a0, a1], "v_max_f32", P8)
        e(f"""v_sub_f32 v{a0}, v{M2}, v{a0}
              v_sub_f32 v{a1}, v{M2+2}, v{a1}
              v_exp_f32 v{a0}, v{a0}
              v_exp_f32 v{a1}, v{a1}
              s_nop 0
              v_mul_f32 v{b0}, v{a0}, v{M2+1}
              v_mul_f32 v{b1}, v{a1}, v{M2+3}""")
        g.dpp_reduce([b0, b1], "v_add_f32", P8)
        e(f"""v_rcp_f32 v{b0}, v{b0}
              v_rcp_f32 v{b1}, v{b1}
              s_nop 0
              v_mul_f32 v{a0}, v{a0}, v{b0}
              v_mul_f32 v{a1}, v{a1}, v{b1}""")
        e(f"""v_bfe_u32 v{vT}, v{vLANE}, 3, 1
              v_lshlrev_b32 v{vT}, 6, v{vT}
              v_lshrrev_b32 v{vT+1}, 4, v{vLANE}
              v_lshl_add_u32 v{vT}, v{vT+1}, 4, v{vT}
              s_lshl_b32 s{sT}, s{sWV}, 8
              s_add_u32 s{sT}, s{sT}, {L_RBUF}
              v_add_u32 v{vT}, s{sT}, v{vT}""")
        g.nop(4)
        for k in range(4): e(f"v_mul_f32 v{D+k}, v{D+k}, v{a0}\nv_mul_f32 v{D+4+k}, v{D+4+k}, v{a1}")
        g.dpp_reduce([D+k for k in range(8)], "v_add_f32", P8)
        e(f"ds_write_b128 v{vT}, {vr(D,4)}\nds_write_b128 v{vT}, {vr(D+4,4)} offset:128")
        g.pair_sync()
        e(f"s_add_u32 s{sT2}, s{sXPWR}, {l*3584}")
        def voff_xp(dst, tmp):
            if c['XPL']:
                e(f"v_lshlrev_b32 v{dst}, 4, v{vLANE}"); return
            e(f"v_lshrrev_b32 v{dst}, 1, v{vLANE}\nv_mul_u32_u24 v{dst}, 896, v{dst}\nv_and_b32 v{tmp}, 1, v{vLANE}\nv_lshl_add_u32 v{dst}, v{tmp}, 4, v{dst}")
        def cond_xp():
            e(f"s_cmp_lt_u32 s{sI}, 28\ns_cselect_b32 s{sT}, s{sT}, 0")
        reduce_store(L_RBUF, voff_xp, sT2, 'xpst', cond_xp)
        g.ts(f"XP{l} stored")
        if l == 3:
            e(f"s_cmp_lg_u32 s2, 0\ns_cbranch_scc1 Lfin")
            xp_gather(l)
            for k in range(8): e(f"v_cvt_pk_bf16_f32 v{32+k}, v{vX+2*k}, v{vX+2*k+1}")
            xoff(sT)
            e(f"v_lshlrev_b32 v{vT}, 4, v{vLANE}\nv_mov_b32 v{vT+1}, {OOB}\nv_cndmask_b32 v{vT}, v{vT+1}, v{vT}, s[{sM56}:{sM56+1}]")
            g.vmem(f"buffer_store_dwordx4 v[32:35], v{vT}, s[{S_OUT}:{S_OUT+3}], s{sT} offen")
            g.vmem(f"buffer_store_dwordx4 v[36:39], v{vT}, s[{S_OUT}:{S_OUT+3}], s{sT} offen offset:896")
            g.ts("out stored")
        else:
            g.nop(2)
            xp_gather(l, lambda: (g.allow(KP[2]), read_w('WQ', (l+1) & 1, WQF, 124, 125)))
            s2_compute(l+1)
            g.ts(f"Q{l+1} stored")
            g.nop(2)
            g.allow(KP[3])
            early_moves(l+1, c['PRE_Q'][l])
    e("Lfin:")
    assert not g.q and len(g.free) == c['DEPTH'], (g.q, g.free)
    if c['TS']:
        g.ts("end")
        e(f"""s_lshl_b32 s{sT}, s2, 2
              s_add_u32 s{sT}, s{sT}, s{sWV}
              s_lshl_b32 s{sT}, s{sT}, 8
              s_add_u32 s{sT}, s{sT}, {W_TS_ABS}
              v_lshlrev_b32 v{vT}, 2, v{vLANE}
              buffer_store_dword v{vTS}, v{vT}, s[{S_WS}:{S_WS+3}], s{sT} offen""")
    e("Lend:")
    body = "\n".join(g.L)
    hdr = f"""; {NAME}
; @launch grid=(256,1,1) block=(256,1,1) lds={L_END}
.amdgcn_target "amdgcn-amd-amdhsa--gfx950"
.text
.globl {NAME}_kernel
.p2align 8
.type {NAME}_kernel,@function
{NAME}_kernel:
"""
    ftr = f"""
s_endpgm
.section .rodata,"a"
.p2align 6
.amdhsa_kernel {NAME}_kernel
  .amdhsa_next_free_vgpr 512
  .amdhsa_next_free_sgpr 102
  .amdhsa_accum_offset 256
  .amdhsa_group_segment_fixed_size 0
  .amdhsa_kernarg_size 104
  .amdhsa_user_sgpr_count 2
  .amdhsa_user_sgpr_kernarg_segment_ptr 1
  .amdhsa_system_sgpr_workgroup_id_x 1
.end_amdhsa_kernel
"""
    return hdr + body + ftr, g.tsnames

if __name__ == "__main__":
    import json
    out = sys.argv[1]
    cfg = json.loads(sys.argv[2]) if len(sys.argv) > 2 else {}
    s, names = build(cfg)
    open(out, "w").write(s)
    if names: json.dump(names, open(out + ".ts.json", "w"))
    print(out, len(s), "bytes", len(s.splitlines()), "lines")
```

```python
import sys, math, struct

NAME = "interleave_layers__gqa_block_cached__gqa_block_cached__decode"

DEFAULT = dict(
    CSTR=8192, TSTR=131072,
    ROT=0,
    NH=(6, 5),
    XH3=0,
    STAG=24,
    KVPOL="nt", WPOL="",
    MV0=6, MV0A=3,
    KP=(0, 2, 0, 0),
    PRE_Q=(0, 0, 0),
    TS=False,
    SPIN=200000, SPINL=4000000,
    SLEEP=1,
    DEPTH=2,
    MPOLL=1, TSP=0, SOLO=0,
    MLX=1,
    XPL=1,
    OPL=1,
    LPOL="auto",
    XPOL="sc1",
    REMAP=0,
    TSL=-1,
)

S_KA, S_VA, S_KB, S_VB = 4, 8, 12, 16
S_WQA, S_WOA, S_WQB, S_WOB = 20, 24, 28, 32
S_WS, S_DBG, S_X, S_OUT = 36, 40, 44, 48
sWV, sHKV, sG, sI = 52, 53, 54, 55
sRING, sTOFF, sWOOFF, sWQOFF = 56, 57, 58, 59
sGB, sOPRD, sMLRD, sXPWR = 60, 61, 62, 63
sQRD, sSPIN, sC, sT = 64, 65, 68, 69
sM56 = 66
sMC2 = 70
sT2, sT3, sROT, sQWR = 72, 73, 74, 75
sOPWR, sMLWR, sBB, sT4 = 76, 77, 78, 79
sTS = 80
sWQ, sSPINL, sFLO, sFLP = 82, 83, 84, 85
sANY = 90
sCNT = 91
sXCC, sLOC = 92, 93
sLO, sHI, sNQ, sPB = 86, 87, 88, 89
vTS = 0
vLANE = 1
vDVO = 2
vAL = 6
vX = 14
vT = 30
vQ = 32
vS = 64
vST = 128
L_WO = 65536
L_WQ = L_WO + 32768
L_OBUF = L_WQ + 28672
L_MLBUF = L_OBUF + 4*2048
L_FLAG = L_MLBUF + 64
L_STG = L_FLAG + 16
L_WFL = L_STG + 8
L_RBUF = L_MLBUF + 256
L_RBUF2 = L_RBUF + 1024
L_XN = L_RBUF2 + 1024
L_QBUF = L_XN + 8192
L_END = L_QBUF + 2048
GSZ = 0x180000
HSZ = 0x30000
W_ML = 0x20000
W_XP = 0x21000
W_Q = 0x25000
W_Q0 = 0x300000
W_TS_ABS = 0x340000
WS_SIZE = 0x400000
OOB = 0x80000000

def vr(a, n=1):
    return f"v{a}" if n == 1 else f"v[{a}:{a+n-1}]"
def f32(x):
    return "0x%08x" % struct.unpack("<I", struct.pack("<f", x))[0]

class Home:
    def __init__(self, kind, base): self.kind, self.base = kind, base
    def r(self, j): return f"{self.kind}[{self.base+4*j}:{self.base+4*j+3}]"
HOMES = [Home('a', 32*k) for k in range(8)] + [Home('v', 160+32*k) for k in range(3)]

class G:
    def __init__(self, cfg):
        self.c = cfg
        self.L = []
        self.vm = []
        self.free = list(range(cfg['DEPTH']))
        self.q = []
        self.slot = {}
        self.mode = None
        self.nlab = 0
        self.nts = 0
        self.tsnames = []
        self.nsync = 0
        self.klimit = None
    def e(self, s):
        for ln in s.split("\n"):
            ln = ln.strip()
            if ln: self.L.append("    " + ln if not ln.endswith(":") else ln)
    def cmt(self, s): self.L.append("    ; " + s)
    def lab(self, p):
        self.nlab += 1
        return f"L{p}_{self.nlab}"
    def nop(self, n):
        while n > 0:
            k = min(n, 8); self.e(f"s_nop {k-1}"); n -= k
    def vmem(self, s, tok=None):
        self.e(s); self.vm.append(tok)
    def lstore(self, ss, toks, pol):
        if pol != "auto":
            for s_, t in zip(ss, toks): self.vmem(f"{s_} {pol}", t)
            return
        ls, ld = self.lab("wt"), self.lab("wd")
        self.e(f"s_cmp_eq_u32 s{sLOC}, 0\ns_cbranch_scc1 {ls}")
        for s_ in ss: self.e(s_)
        self.e(f"s_branch {ld}\n{ls}:")
        for s_, t in zip(ss, toks): self.vmem(f"{s_} sc1", t)
        self.e(f"{ld}:")
    def wait_tok(self, tok):
        idx = None
        for k in range(len(self.vm)-1, -1, -1):
            if self.vm[k] == tok: idx = k; break
        if idx is None: return
        n = len(self.vm) - 1 - idx
        self.e(f"s_waitcnt vmcnt({min(n,63)})")
        self.vm = self.vm[idx+1:]
    def wait_all(self):
        self.e("s_waitcnt vmcnt(0)"); self.vm = []
    def lg(self, n=0): self.e(f"s_waitcnt lgkmcnt({n})")
    def tskeep(self, name):
        L = self.c['TSP'] - 1
        return name in ("start", "end") or name.startswith("V") or f"_{L}" in name or name.startswith((f"q{L+1}", f"OP{L}", f"XP{L}", f"Q{L+1}", f"q{L} ready"))
    def ts(self, name, fine=False):
        if not self.c['TS']: return
        L = self.c['TSL']
        if L >= 0:
            pre = []
            for M in (L-1, L):
                pre += [f"V{M} ", f"OP{M} ", f"S1_{M}", f"S2_{M}", f"Q{M+1}", f"XP{M}", f"q{M+1} "]
            keep = (fine and name[0] in "kv") or name in ("start", "end") or name.startswith(tuple(pre)) or name.startswith(f"q{L} ")
            if not keep: return
        elif self.c['TSP']:
            if not self.tskeep(name): return
        elif fine: return
        assert self.nts < 64
        self.e(f"s_waitcnt lgkmcnt(0)\ns_memrealtime s[{sTS}:{sTS+1}]\ns_waitcnt lgkmcnt(0)\nv_writelane_b32 v{vTS}, s{sTS}, {self.nts}")
        self.tsnames.append(name); self.nts += 1
    def pair_sync(self):
        self.nsync += 1
        k = self.nsync
        lp, ld = self.lab("ps"), self.lab("pd")
        self.e(f"""s_waitcnt lgkmcnt(0)
                   v_mov_b32 v{vT}, s{sFLO}
                   v_mov_b32 v{vT+1}, {k}
                   ds_write_b32 v{vT}, v{vT+1}
                   v_mov_b32 v{vT}, s{sFLP}
                   {lp}:
                   ds_read_b32 v{vT+1}, v{vT}
                   s_waitcnt lgkmcnt(0)
                   v_cmp_gt_u32 vcc, {k}, v{vT+1}
                   s_cbranch_vccz {ld}
                   s_cmp_eq_u32 s{sSPINL}, 0
                   s_cbranch_scc1 {ld}
                   s_sub_u32 s{sSPINL}, s{sSPINL}, 1
                   s_branch {lp}
                   {ld}:""")
    def pump(self, n=99):
        while self.free and self.q and n > 0:
            it = self.q[0]
            if it[0] == 'K' and self.klimit is not None and it[1] == self.klimit[0]:
                if self.klimit[1] <= 0: break
                self.klimit[1] -= 1
            self.q.pop(0); sl = self.free.pop(0)
            self.slot[it] = sl
            self.issue(it, sl); n -= 1
    def allow(self, n):
        if self.klimit is not None: self.klimit[1] += n
        self.pump()
    def release(self, it, pump=True):
        self.free.append(self.slot.pop(it))
        if pump: self.pump()
    def issue(self, it, sl):
        kind, l = it[0], it[1]
        c = self.c
        if kind in ('K', 'V'):
            t = it[2]
            srd = {('K',0):S_KA, ('V',0):S_VA, ('K',1):S_KB, ('V',1):S_VB}[(kind, l & 1)]
            self.e(f"s_add_u32 m0, s{sRING}, {sl*8192}")
            if c['ROT']:
                self.e(f"s_add_u32 s{sT}, s{sROT}, {t*c['TSTR']}\ns_and_b32 s{sT}, s{sT}, {16*c['TSTR']-1}\ns_add_u32 s{sT}, s{sT}, s{sTOFF}")
            else:
                self.e(f"s_add_u32 s{sT}, s{sTOFF}, {t*c['TSTR']}")
            for half in range(2):
                if half:
                    self.e(f"s_add_u32 m0, s{sRING}, {sl*8192+4096}\ns_add_u32 s{sT}, s{sT}, 4096")
                for k in range(4):
                    self.vmem(f"buffer_load_dwordx4 v{vDVO+k}, s[{srd}:{srd+3}], s{sT} offen offset:{k*1024} {c['KVPOL']} lds", it)
        else:
            raise AssertionError(it)
    def setmode(self, m):
        if self.mode == m: return
        self.mode = m
        a, t, u = vAL, vAL+1, vAL+2
        if m == 'K':
            self.e(f"""v_and_b32 v{t}, 15, v{vLANE}
                       v_lshlrev_b32 v{a}, 9, v{t}
                       v_and_b32 v{t}, 7, v{t}
                       v_lshl_add_u32 v{a}, v{t}, 5, v{a}
                       v_lshrrev_b32 v{t}, 5, v{vLANE}
                       v_lshl_add_u32 v{a}, v{t}, 8, v{a}
                       v_bfe_u32 v{t}, v{vLANE}, 4, 1
                       v_lshl_add_u32 v{a}, v{t}, 4, v{a}
                       v_add_u32 v{a}, s{sRING}, v{a}""")
        else:
            self.e(f"""v_lshrrev_b32 v{t}, 2, v{vLANE}
                       v_lshlrev_b32 v{a}, 9, v{t}
                       v_and_b32 v{t}, 7, v{t}
                       v_lshl_add_u32 v{a}, v{t}, 5, v{a}
                       v_and_b32 v{t}, 3, v{vLANE}
                       v_lshl_add_u32 v{a}, v{t}, 3, v{a}
                       v_add_u32 v{a}, s{sRING}, v{a}""")
        for j in range(1, 8): self.e(f"v_xor_b32 v{vAL+j}, {j*32}, v{a}")
    def k_read(self, it, dst):
        self.setmode('K')
        self.wait_tok(it)
        sl = self.slot[it]
        for j in range(8):
            self.e(f"ds_read_b128 {dst(j)}, v{vAL+j} offset:{sl*8192}")
    def k_move(self, it, home):
        self.cmt(f"move {it} -> home {home.kind}{home.base}")
        self.k_read(it, home.r)
        self.lg(0)
        self.release(it)
    def k_mfma(self, t, src, waits):
        for j in range(8):
            if waits: self.lg(7-j)
            cc = "0" if j == 0 else vr(vS+4*t, 4)
            self.e(f"v_mfma_f32_16x16x32_bf16 {vr(vS+4*t,4)}, {src(j)}, {vr(vQ+4*j,4)}, {cc}")
    def k_ring(self, it, t, home=None):
        self.cmt(f"consume {it}")
        src = home.r if home else (lambda j: vr(vST+4*j, 4))
        self.k_read(it, src)
        self.k_mfma(t, src, True)
        self.release(it)
    def v_ring(self, it, u):
        self.cmt(f"consume {it}")
        self.setmode('V')
        self.wait_tok(it)
        sl = self.slot[it]
        def rd(tp):
            self.e(f"ds_read_b64_tr_b16 {vr(vST+2*tp,2)}, v{vAL+(tp&7)} offset:{sl*8192+(tp>>3)*256}")
        for tp in range(8): rd(tp)
        for tp in range(16):
            if tp < 8:
                rd(8+tp); self.lg(8)
            else:
                self.lg(15-tp)
            cc = "0" if u == 0 else vr(vS+4*tp, 4)
            self.e(f"v_mfma_f32_16x16x16_bf16 {vr(vS+4*tp,4)}, {vr(vST+2*tp,2)}, {vr(vQ+2*u,2)}, {cc}")
        self.release(it)
    def xrow_reduce(self, vs, tmps, op):
        for sw in ("v_permlane32_swap_b32", "v_permlane16_swap_b32"):
            for v, t in zip(vs, tmps): self.e(f"v_mov_b32 v{t}, v{v}")
            self.nop(2 if len(vs) == 1 else 1)
            for v, t in zip(vs, tmps): self.e(f"{sw} v{t}, v{v}")
            self.nop(2 if len(vs) == 1 else 1)
            for v, t in zip(vs, tmps): self.e(f"{op} v{v}, v{v}, v{t}")
    def dpp_reduce(self, vs, op, pats):
        for p in pats:
            self.nop(max(0, 3 - len(vs)))
            for v in vs:
                self.e(f"{op}_dpp v{v}, v{v}, v{v} {p} row_mask:0xf bank_mask:0xf")
    def wave_sum(self, vs, tmps):
        self.dpp_reduce(vs, "v_add_f32", [f"row_ror:{r}" for r in (8, 4, 2, 1)])
        self.nop(1)
        self.xrow_reduce(vs, tmps, "v_add_f32")
    def poll(self, issue, check, name, after=None):
        lp, ld = self.lab("poll"+name), self.lab("done"+name)
        issue()
        if after: after()
        self.wait_tok('poll')
        check()
        self.e(f"s_cbranch_vccz {ld}")
        saved = list(self.vm)
        self.e(f"{lp}:")
        self.e(f"s_cmp_eq_u32 s{sSPIN}, 0\ns_cbranch_scc1 {ld}\ns_sub_u32 s{sSPIN}, s{sSPIN}, 1\ns_sleep {self.c['SLEEP']}")
        issue()
        self.e("s_waitcnt vmcnt(0)")
        check()
        self.e(f"s_cbranch_vccnz {lp}")
        self.e(f"{ld}:")
        self.vm = saved
    def mpoll(self, parts, name, after=None):
        if not self.c['MPOLL']:
            regs = [r for p in parts for r in p[0]]
            def issue():
                for p in parts: p[1]()
            return self.poll(issue, lambda: self.check_sent(regs, vT+1), name, after)
        lp, ld = self.lab("poll"+name), self.lab("done"+name)
        for p in parts: p[1]()
        if self.c['TSP']: self.ts(name + " iss", True)
        if after: after()
        self.wait_tok('poll')
        if self.c['TSP']:
            self.ts(name + " 1st", True)
            self.e(f"s_mov_b32 s{sCNT}, 0")
        saved = list(self.vm)
        self.e(f"{lp}:")
        if len(parts) > 1: self.e(f"s_mov_b32 s{sANY}, 0")
        for k, (regs, issue) in enumerate(parts):
            sk = self.lab("sk"+name) if len(parts) > 1 else ld
            self.check_sent(regs, vT+1)
            self.e(f"s_cbranch_vccz {sk}\ns_mov_b64 exec, vcc")
            issue()
            self.e("s_mov_b64 exec, -1")
            if len(parts) > 1: self.e(f"s_mov_b32 s{sANY}, 1\n{sk}:")
        if len(parts) > 1: self.e(f"s_cmp_eq_u32 s{sANY}, 0\ns_cbranch_scc1 {ld}")
        self.e(f"s_waitcnt vmcnt(0)\ns_cmp_eq_u32 s{sSPIN}, 0\ns_cbranch_scc1 {ld}\ns_sub_u32 s{sSPIN}, s{sSPIN}, 1")
        if self.c['SLEEP']: self.e(f"s_sleep {self.c['SLEEP']}")
        if self.c['TSP']: self.e(f"s_add_u32 s{sCNT}, s{sCNT}, 1")
        self.e(f"s_branch {lp}")
        self.e(f"{ld}:")
        if self.c['TSP'] and self.tskeep(name):
            self.e(f"v_writelane_b32 v{vTS}, s{sCNT}, {self.nts}")
            self.tsnames.append(name + " cnt"); self.nts += 1
        self.vm = saved
    def check_sent(self, regs, t):
        regs = list(regs)
        self.e(f"v_max3_u32 v{t}, v{regs[0]}, v{regs[1]}, v{regs[2]}")
        k = 3
        while k < len(regs):
            if k+1 < len(regs):
                self.e(f"v_max3_u32 v{t}, v{t}, v{regs[k]}, v{regs[k+1]}"); k += 2
            else:
                self.e(f"v_max_u32 v{t}, v{t}, v{regs[k]}"); k += 1
        self.e(f"v_cmp_eq_u32 vcc, -1, v{t}")

P8 = ["quad_perm:[1,0,3,2]", "quad_perm:[2,3,0,1]", "row_half_mirror"]

def build(cfg=None):
    c = dict(DEFAULT); c.update(cfg or {})
    g = G(c); e = g.e
    NH = c['NH']
    homeA = HOMES[:NH[0]]; homeB = HOMES[NH[0]:NH[0]+NH[1]]
    assert len(homeB) == NH[1]
    plan = {}
    for l in range(4):
        hm = homeA if l % 2 == 0 else homeB
        p = []
        for t in range(16):
            if t < len(hm): p.append((hm[t], l < 2))
            else: p.append((None, True))
        if l == 3:
            for k in range(min(c['XH3'], len(homeA))):
                t = len(hm) + k
                if t < 16: p[t] = (homeA[k], True)
        plan[l] = p

    e(f"s_cmp_ge_u32 s2, 256\ns_cbranch_scc1 Lend")
    if c['REMAP']:
        e("s_and_b32 s3, s2, 7\ns_lshl_b32 s3, s3, 3\ns_bfe_u32 s4, s2, 0x30003\ns_or_b32 s3, s3, s4\ns_and_b32 s2, s2, 0xc0\ns_or_b32 s2, s2, s3")
    e("s_load_dwordx16 s[72:87], s[0:1], 0\ns_load_dwordx8 s[88:95], s[0:1], 64\ns_load_dwordx2 s[96:97], s[0:1], 96")
    e(f"v_lshrrev_b32 v{vT}, 6, v0\nv_and_b32 v{vLANE}, 63, v0\ns_nop 1\nv_readfirstlane_b32 s{sWV}, v{vT}")
    e(f"s_and_b32 s{sHKV}, s2, 7\ns_lshr_b32 s{sI}, s2, 3\ns_lshr_b32 s{sG}, s{sWV}, 1")
    e(f"s_mov_b32 s{sSPIN}, {c['SPIN']}\ns_mov_b32 s{sC}, {f32(0.0625*math.log2(math.e))}")
    e(f"s_mov_b32 s{sM56}, -1\ns_mov_b32 s{sM56+1}, 0x00ffffff\ns_mov_b32 s{sMC2}, 0x00030003\ns_mov_b32 s{sMC2+1}, 0x00030003")
    e(f"""v_lshrrev_b32 v{vT}, 5, v{vLANE}
          v_and_b32 v{vT+1}, 31, v{vLANE}
          v_lshlrev_b32 v{vDVO+1}, 1, v{vT}
          v_xor_b32 v{vT+1}, v{vT+1}, v{vDVO+1}
          v_lshlrev_b32 v{vT+1}, 4, v{vT+1}
          v_lshl_add_u32 v{vDVO}, v{vT}, 9, v{vT+1}
          v_xor_b32 v{vDVO+1}, 64, v{vDVO}
          v_xor_b32 v{vDVO+2}, 0x80, v{vDVO}
          v_xor_b32 v{vDVO+3}, 0xc0, v{vDVO}""")
    assert c['DEPTH'] <= 2
    e(f"s_mul_i32 s{sRING}, s{sWV}, {c['DEPTH']*8192}")
    e(f"v_mov_b32 v{vTS}, 0")
    e(f"v_and_b32 v{vT}, 7, v{vLANE}\nv_lshlrev_b32 v{vT}, 2, v{vT}\nv_add_u32 v{vT}, {L_FLAG}, v{vT}\nds_write_b32 v{vT}, v{vTS}")
    e("s_waitcnt lgkmcnt(0)\ns_barrier")
    e(f"s_lshr_b32 s3, s{sI}, 3\ns_lshl_b32 s{sT}, s{sG}, 2\ns_add_u32 s{sT}, s{sT}, s3")
    e(f"s_lshl_b32 s{sT}, s{sT}, 3\ns_add_u32 s{sT}, s{sT}, s{sHKV}\ns_lshl_b32 s3, s{sT}, 21")
    def srd(dst, src, size, addoff=False):
        if addoff:
            e(f"s_add_u32 s{dst}, s{src}, s3\ns_addc_u32 s{dst+1}, s{src+1}, 0\ns_and_b32 s{dst+1}, s{dst+1}, 0xffff")
        else:
            e(f"s_mov_b32 s{dst}, s{src}\ns_and_b32 s{dst+1}, s{src+1}, 0xffff")
        e(f"s_mov_b32 s{dst+2}, {size}\ns_mov_b32 s{dst+3}, 0x00020000")
    srd(S_KA, 74, 1 << 21, True); srd(S_VA, 76, 1 << 21, True)
    srd(S_KB, 84, 1 << 21, True); srd(S_VB, 86, 1 << 21, True)
    srd(S_WQA, 78, 448*4096*2); srd(S_WOA, 80, 448*4096*2)
    srd(S_WQB, 88, 448*4096*2); srd(S_WOB, 90, 448*4096*2)
    srd(S_WS, 96, WS_SIZE); srd(S_DBG, 94, 256); srd(S_X, 72, 7168); srd(S_OUT, 92, 7168)
    e(f"s_lshr_b32 s{sBB}, s{sI}, 3\ns_and_b32 s{sWQ}, s{sWV}, 1\ns_mov_b32 s{sSPINL}, {c['SPINL']}")
    e(f"s_lshl_b32 s{sFLO}, s{sWV}, 2\ns_add_u32 s{sFLO}, s{sFLO}, {L_FLAG}\ns_xor_b32 s{sFLP}, s{sFLO}, 4")
    e(f"s_mov_b32 s{sLO}, 0x00003f80\ns_mov_b32 s{sHI}, 0x3f800000\ns_min_u32 s{sNQ}, s{sI}, 27")
    e(f"s_getreg_b32 s{sXCC}, hwreg(HW_REG_XCC_ID, 0, 4)\ns_lshl_b32 s{sXCC}, s{sXCC}, 1\ns_or_b32 s{sXCC}, s{sXCC}, 1\ns_mov_b32 s{sLOC}, 0")
    assert L_FLAG % 8 == 0
    e(f"s_and_b32 s{sT}, s{sI}, 7\ns_lshl_b32 s{sT}, s{sT}, 1\ns_add_u32 s{sT}, s{sT}, s{sWQ}\ns_mul_i32 s{sTOFF}, s{sT}, {c['CSTR']}")
    if c['ROT']:
        e(f"s_lshr_b32 s{sT}, s2, 3\ns_add_u32 s{sT}, s{sT}, s{sHKV}\ns_mul_i32 s{sT}, s{sT}, {c['ROT']}\ns_and_b32 s{sT}, s{sT}, 15\ns_mul_i32 s{sROT}, s{sT}, {c['TSTR']}")
    e(f"s_lshl_b32 s{sT}, s{sHKV}, 1\ns_add_u32 s{sT}, s{sT}, s{sWQ}\ns_mul_i32 s{sWOOFF}, s{sT}, {256*896}\ns_lshl_b32 s{sT}, s{sNQ}, 5\ns_add_u32 s{sWOOFF}, s{sWOOFF}, s{sT}")
    e(f"s_mul_i32 s{sWQOFF}, s{sWQ}, {224*8192}\ns_lshl_b32 s{sT}, s{sHKV}, 10\ns_add_u32 s{sWQOFF}, s{sWQOFF}, s{sT}\ns_lshl_b32 s{sT}, s{sI}, 5\ns_add_u32 s{sWQOFF}, s{sWQOFF}, s{sT}")
    e(f"s_mul_i32 s{sGB}, s{sG}, {GSZ}")
    e(f"s_mul_i32 s{sT}, s{sHKV}, {HSZ}\ns_add_u32 s{sOPRD}, s{sGB}, s{sT}")
    if c['OPL'] == 0:
        e(f"s_lshr_b32 s{sT}, s{sI}, 4\ns_lshl_b32 s{sT}, s{sT}, 13\ns_add_u32 s{sOPWR}, s{sOPRD}, s{sT}\ns_and_b32 s{sT}, s{sI}, 15\ns_lshl_b32 s{sT}, s{sT}, 6\ns_add_u32 s{sOPWR}, s{sOPWR}, s{sT}")
        e(f"s_lshl_b32 s{sT}, s{sWQ}, 14\ns_add_u32 s{sOPWR}, s{sOPWR}, s{sT}")
    else:
        e(f"s_lshl_b32 s{sT}, s{sI}, 9\ns_add_u32 s{sOPWR}, s{sOPRD}, s{sT}\ns_lshl_b32 s{sT}, s{sWQ}, 14\ns_add_u32 s{sOPWR}, s{sOPWR}, s{sT}")
    MLS = 8192 if c['MLX'] else 512
    if c['MLX']:
        e(f"s_add_u32 s{sMLRD}, s{sOPRD}, {0x28000}\ns_lshl_b32 s{sT}, s{sWQ}, 7\ns_add_u32 s{sMLRD}, s{sMLRD}, s{sT}")
        e(f"s_lshl_b32 s{sT}, s{sI}, 8\ns_add_u32 s{sMLWR}, s{sMLRD}, s{sT}")
    else:
        e(f"s_add_u32 s{sMLRD}, s{sOPRD}, {W_ML}\ns_lshl_b32 s{sT}, s{sWQ}, 3\ns_add_u32 s{sMLRD}, s{sMLRD}, s{sT}")
        e(f"s_lshl_b32 s{sT}, s{sI}, 4\ns_add_u32 s{sMLWR}, s{sMLRD}, s{sT}")
    e(f"s_lshl_b32 s{sT}, s{sNQ}, {7 if c['XPL'] else 5}\ns_add_u32 s{sXPWR}, s{sOPRD}, s{sT}\ns_add_u32 s{sXPWR}, s{sXPWR}, {W_XP}")
    if c['XPL']: e(f"s_lshl_b32 s{sQRD}, s{sBB}, 5\ns_lshl_b32 s{sQWR}, s{sI}, 7")
    else:        e(f"s_lshl_b32 s{sQRD}, s{sBB}, 10\ns_lshl_b32 s{sQWR}, s{sI}, 5")
    def qbase(l, dst, rel):
        if l == 0:
            e(f"s_lshl_b32 s{dst}, s{sG}, 3\ns_add_u32 s{dst}, s{dst}, s{sHKV}\ns_lshl_b32 s{dst}, s{dst}, 12\ns_add_u32 s{dst}, s{dst}, {W_Q0}\ns_add_u32 s{dst}, s{dst}, s{rel}")
        else:
            e(f"s_add_u32 s{dst}, s{sOPRD}, {W_Q+(l-1)*4096}\ns_add_u32 s{dst}, s{dst}, s{rel}")

    Q = []
    for l in range(4):
        for t in range(16):
            if plan[l][t][1]: Q.append(('K', l, t))
        for t in range(16): Q.append(('V', l, t))
    g.q = Q

    g.ts("start")
    def xoff(dst):
        e(f"s_lshl_b32 s{dst}, s{sG}, 1\ns_add_u32 s{dst}, s{dst}, s{sWQ}\ns_mul_i32 s{dst}, s{dst}, 1792")
    xoff(sT)
    e(f"v_lshlrev_b32 v{vT}, 4, v{vLANE}\nv_mov_b32 v{vT+1}, {OOB}\nv_cndmask_b32 v{vT}, v{vT+1}, v{vT}, s[{sM56}:{sM56+1}]")
    g.vmem(f"buffer_load_dwordx4 {vr(vST,4)}, v{vT}, s[{S_X}:{S_X+3}], s{sT} offen", 'x')
    g.vmem(f"buffer_load_dwordx4 {vr(vST+4,4)}, v{vT}, s[{S_X}:{S_X+3}], s{sT} offen offset:896", 'x')
    def w_voff(kind, dst, tmp):
        if kind == 'WO': e(f"v_lshrrev_b32 v{dst}, 1, v{vLANE}\nv_mul_u32_u24 v{dst}, 896, v{dst}")
        else:            e(f"v_lshrrev_b32 v{dst}, 1, v{vLANE}\nv_lshlrev_b32 v{dst}, 13, v{dst}")
        e(f"v_and_b32 v{tmp}, 1, v{vLANE}\nv_lshl_add_u32 v{dst}, v{tmp}, 4, v{dst}")
    def w_load(kind, p, va, tok):
        srd = {('WO',0):S_WOA, ('WO',1):S_WOB, ('WQ',0):S_WQA, ('WQ',1):S_WQB}[(kind, p)]
        n, step, base = (8, 32*896, sWOOFF) if kind == 'WO' else (7, 32*8192, sWQOFF)
        lb, hs = (L_WO + p*16384, 8192) if kind == 'WO' else (L_WQ + p*14336, 7168)
        e(f"s_mul_i32 s{sT2}, s{sWQ}, {hs}\ns_add_u32 s{sT2}, s{sT2}, {lb}")
        for k in range(n):
            e(f"s_add_u32 m0, s{sT2}, {k*1024}\ns_add_u32 s{sT}, s{base}, {k*step}")
            g.vmem(f"buffer_load_dwordx4 v{va}, s[{srd}:{srd+3}], s{sT} offen {c['WPOL']} lds", tok)
    w_voff('WQ', vT, vT+1)
    e(f"s_mul_i32 s{sT2}, s{sWQ}, 7168\ns_add_u32 s{sT2}, s{sT2}, {L_WQ}")
    for k in range(4):
        e(f"""s_lshl_b32 s{sT3}, s{sG}, 2
              s_add_u32 s{sT3}, s{sT3}, {k}
              s_min_u32 s{sT3}, s{sT3}, 6
              s_lshl_b32 s{sT}, s{sT3}, 10
              s_add_u32 m0, s{sT2}, s{sT}
              s_lshl_b32 s{sT}, s{sT3}, 18
              s_add_u32 s{sT}, s{sT}, s{sWQOFF}""")
        g.vmem(f"buffer_load_dwordx4 v{vT}, s[{S_WQA}:{S_WQA+3}], s{sT} offen {c['WPOL']} lds", 'wqa')
    e(f"s_mul_i32 s{sT}, s{sI}, 6144\ns_add_u32 s{sT}, s{sT}, s{sOPRD}\ns_lshl_b32 s{sT2}, s{sWQ}, 10\ns_add_u32 s{sT}, s{sT}, s{sT2}")
    e(f"v_lshlrev_b32 v{vT}, 4, v{vLANE}")
    for k in range(4): e(f"v_mov_b32 v{vST+8+k}, -1")
    for k in range(3):
        g.vmem(f"buffer_store_dwordx4 {vr(vST+8,4)}, v{vT}, s[{S_WS}:{S_WS+3}], s{sT} offen offset:{k*2048 if k < 2 else 0} sc1" if k < 2 else
               f"buffer_store_dwordx4 {vr(vST+8,4)}, v{vT}, s[{S_WS}:{S_WS+3}], s{sT2} offen sc1", 'fill')
        if k == 1: e(f"s_add_u32 s{sT2}, s{sT}, 4096")
    g.pump()
    g.wait_tok('x')
    for k in range(8):
        e(f"v_lshlrev_b32 v{vX+2*k}, 16, v{vST+k}\nv_and_b32 v{vX+2*k+1}, 0xffff0000, v{vST+k}")

    WOF = 64
    WQF = 96
    def read_w(kind, p, dst, t0, t1):
        g.cmt(f"read {kind}{p} fragments")
        nst = 8 if kind == 'WO' else 7
        lb, hs = (L_WO + p*16384, 8192) if kind == 'WO' else (L_WQ + p*14336, 7168)
        e(f"""v_lshrrev_b32 v{t0}, 4, v{vLANE}
              v_lshlrev_b32 v{t0}, 8, v{t0}
              v_bfe_u32 v{t1}, v{vLANE}, 2, 2
              v_lshl_add_u32 v{t0}, v{t1}, 5, v{t0}
              v_and_b32 v{t1}, 3, v{vLANE}
              v_lshl_add_u32 v{t0}, v{t1}, 3, v{t0}
              s_mul_i32 s{sT}, s{sWQ}, {hs}
              s_add_u32 s{sT}, s{sT}, {lb}
              v_add_u32 v{t0}, s{sT}, v{t0}""")
        n = 0
        for st in range(nst):
            for hf in range(2):
                e(f"ds_read_b64_tr_b16 {vr(dst+4*st+2*hf,2)}, v{t0} offset:{st*1024+hf*128}")
                n += 1
                if n == 8: g.lg(4)
        g.lg(0)
    def lds_wait(addr_code, val):
        lp, ld = g.lab("lw"), g.lab("lwd")
        addr_code()
        e(f"""{lp}:
              ds_read_b32 v{vT+1}, v{vT}
              s_waitcnt lgkmcnt(0)
              v_cmp_gt_u32 vcc, {val}, v{vT+1}
              s_cbranch_vccz {ld}
              s_cmp_eq_u32 s{sSPINL}, 0
              s_cbranch_scc1 {ld}
              s_sub_u32 s{sSPINL}, s{sSPINL}, 1
              s_sleep 2
              s_branch {lp}
              {ld}:""")

    def reduce_store(rbuf, voff_code, soff, tok, extra_cond=None, pol="sc1"):
        R = 64
        t = vT
        e(f"""s_lshl_b32 s{sT}, s{sG}, 9
              s_add_u32 s{sT}, s{sT}, {rbuf}
              v_and_b32 v{t}, 7, v{vLANE}
              v_lshlrev_b32 v{t}, 5, v{t}
              v_add_u32 v{t}, s{sT}, v{t}""")
        for w in range(2):
            e(f"ds_read_b128 {vr(R+8*w,4)}, v{t} offset:{w*256}\nds_read_b128 {vr(R+8*w+4,4)}, v{t} offset:{w*256+16}")
        voff_code(t+1, R+16)
        e(f"s_cmp_eq_u32 s{sWQ}, 0\ns_cselect_b32 s{sT}, 8, 0")
        if extra_cond: extra_cond()
        e(f"""v_cmp_gt_u32 vcc, s{sT}, v{vLANE}
              v_mov_b32 v{R+16}, {OOB}
              s_nop 0
              v_cndmask_b32 v{t+1}, v{R+16}, v{t+1}, vcc""")
        g.lg(0)
        for k in range(8): e(f"v_add_f32 v{R+k}, v{R+k}, v{R+8+k}")
        for k in range(4): e(f"v_cvt_pk_bf16_f32 v{R+8+k}, v{R+2*k}, v{R+2*k+1}")
        for k in range(4): e(f"v_min_u32 v{R+8+k}, -2, v{R+8+k}")
        g.lstore([f"buffer_store_dwordx4 {vr(R+8,4)}, v{t+1}, s[{S_WS}:{S_WS+3}], s{soff} offen"], [tok], pol)

    def s2_compute(l):
        g.cmt(f"S2 compute -> Q[{l}]")
        d = 64
        t0, t1, u0, u1 = 80, 81, 82, 83
        for ee, t in ((0, t0), (1, t1)):
            x = vX + 8*ee
            e(f"v_add_f32 v{t}, v{x}, v{x+1}")
            for k in range(2, 8): e(f"v_add_f32 v{t}, v{t}, v{x+k}")
        g.wave_sum([t0, t1], [u0, u1])
        e(f"v_mul_f32 v{t0}, {f32(1.0/448)}, v{t0}\nv_mul_f32 v{t1}, {f32(1.0/448)}, v{t1}")
        for ee, t in ((0, t0), (1, t1)):
            for k in range(8): e(f"v_sub_f32 v{d+8*ee+k}, v{vX+8*ee+k}, v{t}")
        for ee, t in ((0, t0), (1, t1)):
            e(f"v_mul_f32 v{t}, v{d+8*ee}, v{d+8*ee}")
            for k in range(1, 8): e(f"v_fmac_f32 v{t}, v{d+8*ee+k}, v{d+8*ee+k}")
        e(f"v_cndmask_b32 v{t0}, 0, v{t0}, s[{sM56}:{sM56+1}]\nv_cndmask_b32 v{t1}, 0, v{t1}, s[{sM56}:{sM56+1}]")
        g.wave_sum([t0, t1], [u0, u1])
        e(f"""v_mov_b32 v{u0}, {f32(1e-5)}
              v_mov_b32 v{u1}, {f32(1e-5)}
              v_fmac_f32 v{u0}, {f32(1.0/448)}, v{t0}
              v_fmac_f32 v{u1}, {f32(1.0/448)}, v{t1}
              v_rsq_f32 v{u0}, v{u0}
              v_rsq_f32 v{u1}, v{u1}
              s_nop 0""")
        for ee, u in ((0, u0), (1, u1)):
            for k in range(8): e(f"v_mul_f32 v{d+8*ee+k}, v{d+8*ee+k}, v{u}")
        pk = 84
        for ee in range(2):
            for k in range(4): e(f"v_cvt_pk_bf16_f32 v{pk+4*ee+k}, v{d+8*ee+2*k}, v{d+8*ee+2*k+1}")
        e(f"""s_lshl_b32 s{sT}, s{sWV}, 11
              s_add_u32 s{sT}, s{sT}, {L_XN}
              v_lshlrev_b32 v{vT}, 4, v{vLANE}
              v_add_u32 v{vT}, s{sT}, v{vT}
              ds_write_b128 v{vT}, {vr(pk,4)}
              ds_write_b128 v{vT}, {vr(pk+4,4)} offset:1024""")
        if l == 0:
            g.wait_tok('wqa')
            g.lg(0)
            e("s_barrier")
            read_w('WQ', 0, WQF, 124, 125)
        else:
            g.pair_sync()
        e(f"""v_and_b32 v{vT}, 3, v{vLANE}
              v_lshlrev_b32 v{vT}, 10, v{vT}
              v_lshrrev_b32 v{vT+1}, 4, v{vLANE}
              v_lshl_add_u32 v{vT}, v{vT+1}, 4, v{vT}
              s_lshl_b32 s{sT}, s{sG}, 12
              s_mul_i32 s{sT2}, s{sWQ}, 448
              s_add_u32 s{sT}, s{sT}, s{sT2}
              s_add_u32 s{sT}, s{sT}, {L_XN}
              v_add_u32 v{vT}, s{sT}, v{vT}""")
        XB, D = 32, 92
        for st in range(7): e(f"ds_read_b128 {vr(XB+4*st,4)}, v{vT} offset:{st*64}")
        for st in range(7):
            g.lg(6-st)
            cc = "0" if st == 0 else vr(D, 4)
            e(f"v_mfma_f32_16x16x32_bf16 {vr(D,4)}, {vr(WQF+4*st,4)}, {vr(XB+4*st,4)}, {cc}")
        e(f"""v_and_b32 v{vT}, 3, v{vLANE}
              v_lshlrev_b32 v{vT}, 6, v{vT}
              v_lshrrev_b32 v{vT+1}, 4, v{vLANE}
              v_lshl_add_u32 v{vT}, v{vT+1}, 4, v{vT}
              s_lshl_b32 s{sT}, s{sWV}, 8
              s_add_u32 s{sT}, s{sT}, {L_RBUF2}
              v_add_u32 v{vT}, s{sT}, v{vT}""")
        g.nop(8)
        e(f"ds_write_b128 v{vT}, {vr(D,4)}")
        g.pair_sync()
        qbase(l, sT2, sQWR)
        def voff(dst, tmp):
            if c['XPL']:
                e(f"v_lshlrev_b32 v{dst}, 4, v{vLANE}"); return
            e(f"v_lshrrev_b32 v{dst}, 1, v{vLANE}\nv_lshlrev_b32 v{dst}, 10, v{dst}\nv_and_b32 v{tmp}, 1, v{vLANE}\nv_lshl_add_u32 v{dst}, v{tmp}, 4, v{dst}")
        reduce_store(L_RBUF2, voff, sT2, ('qst', l), pol=c['LPOL'] if l > 0 else "sc1")

    def load_q(l):
        g.cmt(f"load q for layer {l}")
        qbase(l, sT2, sQRD)
        if c['XPL']:
            e(f"v_lshrrev_b32 v{vT}, 1, v{vLANE}\nv_lshlrev_b32 v{vT}, 7, v{vT}\nv_and_b32 v{vT+1}, 1, v{vLANE}\nv_lshl_add_u32 v{vT}, v{vT+1}, 4, v{vT}")
        else:
            e(f"v_lshlrev_b32 v{vT}, 4, v{vLANE}")
        R = vST
        def issue(): g.vmem(f"buffer_load_dwordx4 {vr(R,4)}, v{vT}, s[{S_WS}:{S_WS+3}], s{sT2} offen sc1", 'poll')
        if l == 0:
            issue(); g.wait_tok('poll')
        else:
            g.mpoll([(list(range(R, R+4)), issue)], f"q{l}")
        e(f"s_lshl_b32 s{sT}, s{sG}, 10\ns_add_u32 s{sT}, s{sT}, {L_QBUF}\nv_lshlrev_b32 v{vT}, 4, v{vLANE}\nv_add_u32 v{vT}, s{sT}, v{vT}\nds_write_b128 v{vT}, {vr(R,4)}")
        e(f"""v_and_b32 v{vT+1}, 1, v{vLANE}
              v_lshlrev_b32 v{vT+1}, 9, v{vT+1}
              v_bfe_u32 v{vT}, v{vLANE}, 4, 1
              v_lshl_add_u32 v{vT+1}, v{vT}, 4, v{vT+1}
              v_lshrrev_b32 v{vT}, 5, v{vLANE}
              v_lshl_add_u32 v{vT+1}, v{vT}, 8, v{vT+1}
              v_add_u32 v{vT+1}, s{sT}, v{vT+1}""")
        g.lg(0)
        for j in range(8): e(f"ds_read_b128 {vr(vQ+4*j,4)}, v{vT+1} offset:{j*32}")
        g.lg(0)

    moved = set()
    def early_moves(l, n):
        for t in range(16):
            if n <= 0: break
            hm, ld = plan[l][t]
            it = ('K', l, t)
            if hm is not None and ld and it not in moved and it in g.slot:
                g.k_move(it, hm); moved.add(it); n -= 1

    XG = list(range(32, 64)) + list(range(128, 160))
    def xp_gather(l, after=None):
        g.cmt("XP gather")
        if c['XPL']:
            e(f"""s_lshl_b32 s{sT}, s{sWQ}, 6
                  v_lshrrev_b32 v{vT}, 1, v{vLANE}
                  v_lshlrev_b32 v{vT}, 7, v{vT}
                  v_and_b32 v{vT+1}, 1, v{vLANE}
                  v_lshl_add_u32 v{vT}, v{vT+1}, 4, v{vT}""")
        else:
            e(f"""s_mul_i32 s{sT}, s{sWQ}, 1792
                  v_lshlrev_b32 v{vT}, 4, v{vLANE}""")
        e(f"""v_add_u32 v{vT}, s{sT}, v{vT}
              v_mov_b32 v{vT+1}, {OOB}
              v_cndmask_b32 v{vT}, v{vT+1}, v{vT}, s[{sM56}:{sM56+1}]
              s_add_u32 s{sT2}, s{sGB}, {W_XP + l*3584}""")
        EOFF = 32 if c['XPL'] else 896
        def part(hk):
            a = XG[8*hk]
            def issue():
                so = sT2
                if hk:
                    e(f"s_add_u32 s{sT3}, s{sT2}, {hk*HSZ}"); so = sT3
                g.vmem(f"buffer_load_dwordx4 {vr(a,4)}, v{vT}, s[{S_WS}:{S_WS+3}], s{so} offen sc1", 'poll')
                g.vmem(f"buffer_load_dwordx4 {vr(a+4,4)}, v{vT}, s[{S_WS}:{S_WS+3}], s{so} offen offset:{EOFF} sc1", 'poll')
            return (XG[8*hk:8*hk+8], issue)
        g.mpoll([part(hk) for hk in range(8)], f"s2_{l}", after)
        g.ts(f"S2_{l} got")
        for hk in range(8):
            for ee in range(2):
                for k in range(4):
                    a = XG[8*hk] + 4*ee + k
                    e(f"v_dot2c_f32_bf16 v{vX+8*ee+2*k}, s{sLO}, v{a}\nv_dot2c_f32_bf16 v{vX+8*ee+2*k+1}, s{sHI}, v{a}")

    def stag_write():
        e(f"s_lshl_b32 s{sT}, s{sG}, 2\ns_add_u32 s{sT}, s{sT}, {L_STG}\nv_mov_b32 v{vT}, s{sT}\nv_mov_b32 v{vT+1}, 1\nds_write_b32 v{vT}, v{vT+1}")

    s2_compute(0)
    g.ts("q0 stored")
    nmv = min(c['MV0'], c['MV0A'])
    early_moves(0, nmv)
    g.wait_tok(('qst', 0))
    e("s_barrier")
    e(f"""s_cmp_eq_u32 s{sWV}, 0
          s_cselect_b32 s{sT}, 1, 0
          v_cmp_gt_u32 vcc, s{sT}, v{vLANE}
          v_mov_b32 v{vT}, {OOB}
          v_mov_b32 v{vT+1}, s2
          v_cndmask_b32 v{vT}, v{vT}, v{vT+1}, vcc
          v_mov_b32 v{vT+1}, s{sXCC}""")
    g.vmem(f"buffer_store_byte v{vT+1}, v{vT}, s[{S_DBG}:{S_DBG+3}], 0 offen sc1", 'flag')
    early_moves(0, c['MV0'] - nmv)
    g.ts("moves0")
    e(f"v_lshlrev_b32 v{vT}, 2, v{vLANE}")
    FR = vST
    def issue_f(): g.vmem(f"buffer_load_dword v{FR}, v{vT}, s[{S_DBG}:{S_DBG+3}], 0 offen sc1", 'poll')
    def check_f(): e(f"v_and_b32 v{FR+1}, 0x01010101, v{FR}\nv_cmp_ne_u32 vcc, 0x01010101, v{FR+1}")
    g.poll(issue_f, check_f, "init")
    e(f"""s_and_b32 s{sT}, s{sHKV}, 3
          s_lshl_b32 s{sT}, s{sT}, 3
          v_lshrrev_b32 v{FR+1}, s{sT}, v{FR}
          v_and_b32 v{FR+1}, 0xff, v{FR+1}
          s_lshr_b32 s{sT}, s{sHKV}, 2
          v_cmp_ne_u32 vcc, s{sXCC}, v{FR+1}
          s_mov_b32 s{sT2}, 0x55555555
          s_lshl_b32 s{sT2}, s{sT2}, s{sT}
          s_and_b32 s{sT}, vcc_lo, s{sT2}
          s_and_b32 s{sT2}, vcc_hi, s{sT2}
          s_or_b32 s{sT}, s{sT}, s{sT2}
          s_cmp_eq_u32 s{sT}, 0
          s_cselect_b32 s{sLOC}, 1, 0""")
    g.ts("init done")
    lskip = g.lab("wskip")
    e(f"s_cmp_eq_u32 s{sG}, 0\ns_cbranch_scc1 {lskip}")
    saved = list(g.vm)
    w_voff('WO', vT, vT+1)
    w_load('WO', 0, vT, 'w'); w_load('WO', 1, vT, 'w')
    w_voff('WQ', vT, vT+1)
    w_load('WQ', 1, vT, 'w')
    e("s_waitcnt vmcnt(0)")
    e(f"s_lshl_b32 s{sT}, s{sWQ}, 2\ns_add_u32 s{sT}, s{sT}, {L_WFL}\nv_mov_b32 v{vT}, s{sT}\nv_mov_b32 v{vT+1}, 1\nds_write_b32 v{vT}, v{vT+1}")
    if c['SOLO']: e("s_branch Lfin")
    e(f"{lskip}:")
    g.vm = saved
    if c['STAG'] >= 0:
        lp, ld = g.lab("stg"), g.lab("stgd")
        e(f"""v_mov_b32 v{vT}, {L_STG}
              {lp}:
              ds_read_b32 v{vT+1}, v{vT}
              s_waitcnt lgkmcnt(0)
              v_cmp_gt_u32 vcc, s{sG}, v{vT+1}
              s_cbranch_vccz {ld}
              s_cmp_eq_u32 s{sSPINL}, 0
              s_cbranch_scc1 {ld}
              s_sub_u32 s{sSPINL}, s{sSPINL}, 1
              s_sleep 2
              s_branch {lp}
              {ld}:""")

    KP = c['KP']
    for l in range(4):
        load_q(l)
        g.ts(f"q{l} ready")
        g.klimit = None
        g.pump()
        if l < 3: g.klimit = [l+1, KP[0]]
        order = [t for t in range(16) if plan[l][t][0] is not None and (not plan[l][t][1] or ('K', l, t) in moved)]
        order += [t for t in range(16) if t not in order]
        for n, t in enumerate(order):
            hm, ld = plan[l][t]
            it = ('K', l, t)
            if hm is not None and (not ld or it in moved):
                g.cmt(f"resident K tile {t}")
                g.k_mfma(t, hm.r, False)
            else:
                g.k_ring(it, t, hm)
            if l == 0 and c['STAG'] == n: stag_write()
            if l == c['TSL']: g.ts(f"k{n}", True)
        g.ts(f"K{l} done")
        g.nop(8)
        m, t1, ls, nm = vST, vST+1, vST+2, vST+3
        e(f"v_max3_f32 v{m}, v{vS}, v{vS+1}, v{vS+2}\nv_max3_f32 v{t1}, v{vS+3}, v{vS+4}, v{vS+5}")
        k = 6
        while k < 64:
            tgt = m if ((k - 6)//2) % 2 == 0 else t1
            e(f"v_max3_f32 v{tgt}, v{tgt}, v{vS+k}, v{vS+k+1}"); k += 2
        e(f"v_max_f32 v{m}, v{m}, v{t1}")
        g.xrow_reduce([m], [t1], "v_max_f32")
        e(f"v_mul_f32 v{m}, s{sC}, v{m}\nv_mov_b32 v{ls}, 0\nv_mov_b32 v{nm}, 0")
        for t in range(16):
            b = vS + 4*t
            for r in range(4): e(f"v_fma_f32 v{b+r}, v{b+r}, s{sC}, -v{m}")
            for r in range(4): e(f"v_exp_f32 v{b+r}, v{b+r}")
            e(f"v_cvt_pk_bf16_f32 v{vQ+2*t}, v{b}, v{b+1}\nv_add_f32 v{ls}, v{ls}, v{b}\nv_add_f32 v{nm}, v{nm}, v{b+1}")
            e(f"v_cvt_pk_bf16_f32 v{vQ+2*t+1}, v{b+2}, v{b+3}\nv_add_f32 v{ls}, v{ls}, v{b+2}\nv_add_f32 v{nm}, v{nm}, v{b+3}")
        e(f"v_add_f32 v{ls}, v{ls}, v{nm}")
        g.xrow_reduce([ls], [t1], "v_add_f32")
        e(f"""v_mov_b32 v{t1}, v{ls}
              v_and_b32 v{nm}, 1, v{vLANE}
              v_lshlrev_b32 v{nm}, 3, v{nm}
              s_lshl_b32 s{sT}, s{sWV}, 4
              s_add_u32 s{sT}, s{sT}, {L_MLBUF}
              v_add_u32 v{nm}, s{sT}, v{nm}
              ds_write_b64 v{nm}, v[{m}:{m+1}]
              s_waitcnt lgkmcnt(0)""")
        g.ts(f"sm{l} done")
        for u in range(16):
            g.v_ring(('V', l, u), u)
            if l == 0 and c['STAG'] == 16 + u: stag_write()
            if l == c['TSL']: g.ts(f"v{u}", True)
        g.ts(f"V{l} done")
        e(f"""v_and_b32 v{vT}, 1, v{vLANE}
              v_lshlrev_b32 v{vT}, 10, v{vT}
              v_lshrrev_b32 v{vT+1}, 4, v{vLANE}
              v_lshl_add_u32 v{vT}, v{vT+1}, 4, v{vT}
              s_lshl_b32 s{sT}, s{sWV}, 11
              s_add_u32 s{sT}, s{sT}, {L_OBUF}
              v_add_u32 v{vT}, s{sT}, v{vT}""")
        g.nop(8)
        e(f"s_mov_b64 exec, s[{sMC2}:{sMC2+1}]")
        for tp in range(16):
            e(f"ds_write_b128 v{vT}, {vr(vS+4*tp,4)} offset:{tp*64}")
            if tp == 11: g.lg(4)
        e("s_mov_b64 exec, -1")
        g.pair_sync()
        ML, OO, MM = 32, 40, 36
        e(f"""s_lshl_b32 s{sT}, s{sG}, 5
              s_lshl_b32 s{sT2}, s{sWQ}, 3
              s_add_u32 s{sT}, s{sT}, s{sT2}
              s_add_u32 s{sT}, s{sT}, {L_MLBUF}
              v_mov_b32 v{vT}, s{sT}
              s_lshl_b32 s{sT}, s{sG}, 12
              s_lshl_b32 s{sT2}, s{sWQ}, 10
              s_add_u32 s{sT}, s{sT}, s{sT2}
              s_add_u32 s{sT}, s{sT}, {L_OBUF}
              v_and_b32 v{vT+1}, 31, v{vLANE}
              v_lshlrev_b32 v{vT+1}, 5, v{vT+1}
              v_add_u32 v{vT+1}, s{sT}, v{vT+1}""")
        for w in range(2): e(f"ds_read_b64 {vr(ML+2*w,2)}, v{vT} offset:{w*16}")
        for w in range(2):
            e(f"ds_read_b128 {vr(OO+8*w,4)}, v{vT+1} offset:{w*2048}\nds_read_b128 {vr(OO+8*w+4,4)}, v{vT+1} offset:{w*2048+16}")
        A1, A2, A3 = 56, 57, 58
        if c['OPL'] == 0:
            e(f"""v_lshrrev_b32 v{A1}, 2, v{vLANE}
                  v_lshlrev_b32 v{A1}, 10, v{A1}
                  v_and_b32 v{A3}, 3, v{vLANE}
                  v_lshl_add_u32 v{A1}, v{A3}, 4, v{A1}""")
        else:
            e(f"v_lshlrev_b32 v{A1}, 4, v{vLANE}")
        e(f"""v_cmp_gt_u32 vcc, 32, v{vLANE}
              v_mov_b32 v{A3}, {OOB}
              s_nop 0
              v_cndmask_b32 v{A1}, v{A3}, v{A1}, vcc
              v_cmp_eq_u32 vcc, 0, v{vLANE}
              v_mov_b32 v{A2}, 0
              s_nop 0
              v_cndmask_b32 v{A2}, v{A3}, v{A2}, vcc""")
        g.lg(4)
        e(f"""v_max_f32 v{MM}, v{ML}, v{ML+2}
              v_sub_f32 v{ML}, v{ML}, v{MM}
              v_sub_f32 v{ML+2}, v{ML+2}, v{MM}
              v_exp_f32 v{ML}, v{ML}
              v_exp_f32 v{ML+2}, v{ML+2}
              s_nop 0
              v_mul_f32 v{MM+1}, v{ML}, v{ML+1}
              v_fmac_f32 v{MM+1}, v{ML+2}, v{ML+3}""")
        g.lg(0)
        for k in range(8): e(f"v_mul_f32 v{OO+k}, v{OO+k}, v{ML}")
        for k in range(8): e(f"v_fmac_f32 v{OO+k}, v{OO+8+k}, v{ML+2}")
        for k in range(4): e(f"v_cvt_pk_bf16_f32 v{OO+8+k}, v{OO+2*k}, v{OO+2*k+1}")
        for k in range(4): e(f"v_min_u32 v{OO+8+k}, -2, v{OO+8+k}")
        e(f"s_add_u32 s{sT2}, s{sOPWR}, {l*32768}\ns_add_u32 s{sT3}, s{sMLWR}, {l*MLS}")
        g.lstore([f"buffer_store_dwordx4 {vr(OO+8,4)}, v{A1}, s[{S_WS}:{S_WS+3}], s{sT2} offen",
                  f"buffer_store_dwordx2 {vr(MM,2)}, v{A2}, s[{S_WS}:{S_WS+3}], s{sT3} offen"], ['opst', 'mlst'], c['LPOL'])
        g.ts(f"OP{l} stored")
        g.nop(2)
        VA, VB = 120, 121
        e(f"""v_and_b32 v{VA}, 15, v{vLANE}
              v_lshlrev_b32 v{VB}, {8 if c['MLX'] else 4}, v{VA}
              v_lshlrev_b32 v{VA}, {6 if c['OPL'] == 0 else 9}, v{VA}
              v_lshrrev_b32 v{vT}, 4, v{vLANE}
              v_lshl_add_u32 v{VA}, v{vT}, 4, v{VA}
              s_lshl_b32 s{sT}, s{sWQ}, 14
              s_add_u32 s{sT2}, s{sOPRD}, {l*32768}
              s_add_u32 s{sT2}, s{sT2}, s{sT}
              s_add_u32 s{sT3}, s{sMLRD}, {l*MLS}""")
        M2 = 124
        BG = [32, 128]
        def part_s1(nt):
            def issue():
                if c['MLX'] and nt:
                    e(f"s_add_u32 s{sT4}, s{sT3}, 4096")
                    g.vmem(f"buffer_load_dwordx2 {vr(M2+2*nt,2)}, v{VB}, s[{S_WS}:{S_WS+3}], s{sT4} offen sc1", 'poll')
                else:
                    g.vmem(f"buffer_load_dwordx2 {vr(M2+2*nt,2)}, v{VB}, s[{S_WS}:{S_WS+3}], s{sT3} offen offset:{256*nt} sc1", 'poll')
                for st in range(8):
                    if c['OPL'] == 0:
                        if (nt, st) == (0, 0): so = sT2
                        elif st % 4 == 0:
                            e(f"s_add_u32 s{sT4}, s{sT2}, {nt*8192 + st*1024}"); so = sT4
                        off = (st%4)*1024
                    else:
                        if nt == 0: so = sT2
                        elif st == 0:
                            e(f"s_add_u32 s{sT4}, s{sT2}, 8192"); so = sT4
                        off = st*64
                    g.vmem(f"buffer_load_dwordx4 {vr(BG[nt]+4*st,4)}, v{VA}, s[{S_WS}:{S_WS+3}], s{so} offen offset:{off} sc1", 'poll')
            return ([M2+2*nt, M2+2*nt+1] + list(range(BG[nt], BG[nt]+32)), issue)
        def after_s1():
            if l == 0:
                lds_wait(lambda: e(f"s_lshl_b32 s{sT}, s{sWQ}, 2\ns_add_u32 s{sT}, s{sT}, {L_WFL}\nv_mov_b32 v{vT}, s{sT}"), 1)
            if l < 3: g.allow(KP[1])
            read_w('WO', l & 1, WOF, 122, 123)
        g.mpoll([part_s1(0), part_s1(1)], f"s1_{l}", after_s1)
        g.ts(f"S1_{l} got")
        D = 96
        for st in range(8):
            for nt in range(2):
                cc = "0" if st == 0 else vr(D+4*nt, 4)
                e(f"v_mfma_f32_16x16x32_bf16 {vr(D+4*nt,4)}, {vr(WOF+4*st,4)}, {vr(BG[nt]+4*st,4)}, {cc}")
        a0, a1, b0, b1 = 104, 105, 106, 107
        e(f"v_mov_b32 v{a0}, v{M2}\nv_mov_b32 v{a1}, v{M2+2}")
        g.dpp_reduce([a0, a1], "v_max_f32", P8)
        e(f"""v_sub_f32 v{a0}, v{M2}, v{a0}
              v_sub_f32 v{a1}, v{M2+2}, v{a1}
              v_exp_f32 v{a0}, v{a0}
              v_exp_f32 v{a1}, v{a1}
              s_nop 0
              v_mul_f32 v{b0}, v{a0}, v{M2+1}
              v_mul_f32 v{b1}, v{a1}, v{M2+3}""")
        g.dpp_reduce([b0, b1], "v_add_f32", P8)
        e(f"""v_rcp_f32 v{b0}, v{b0}
              v_rcp_f32 v{b1}, v{b1}
              s_nop 0
              v_mul_f32 v{a0}, v{a0}, v{b0}
              v_mul_f32 v{a1}, v{a1}, v{b1}""")
        e(f"""v_bfe_u32 v{vT}, v{vLANE}, 3, 1
              v_lshlrev_b32 v{vT}, 6, v{vT}
              v_lshrrev_b32 v{vT+1}, 4, v{vLANE}
              v_lshl_add_u32 v{vT}, v{vT+1}, 4, v{vT}
              s_lshl_b32 s{sT}, s{sWV}, 8
              s_add_u32 s{sT}, s{sT}, {L_RBUF}
              v_add_u32 v{vT}, s{sT}, v{vT}""")
        g.nop(4)
        for k in range(4): e(f"v_mul_f32 v{D+k}, v{D+k}, v{a0}\nv_mul_f32 v{D+4+k}, v{D+4+k}, v{a1}")
        g.dpp_reduce([D+k for k in range(8)], "v_add_f32", P8)
        e(f"ds_write_b128 v{vT}, {vr(D,4)}\nds_write_b128 v{vT}, {vr(D+4,4)} offset:128")
        g.pair_sync()
        e(f"s_add_u32 s{sT2}, s{sXPWR}, {l*3584}")
        def voff_xp(dst, tmp):
            if c['XPL']:
                e(f"v_lshlrev_b32 v{dst}, 4, v{vLANE}"); return
            e(f"v_lshrrev_b32 v{dst}, 1, v{vLANE}\nv_mul_u32_u24 v{dst}, 896, v{dst}\nv_and_b32 v{tmp}, 1, v{vLANE}\nv_lshl_add_u32 v{dst}, v{tmp}, 4, v{dst}")
        def cond_xp():
            e(f"s_cmp_lt_u32 s{sI}, 28\ns_cselect_b32 s{sT}, s{sT}, 0")
        reduce_store(L_RBUF, voff_xp, sT2, 'xpst', cond_xp, pol=c['XPOL'])
        g.ts(f"XP{l} stored")
        if l == 3:
            e(f"s_cmp_lg_u32 s2, 0\ns_cbranch_scc1 Lfin")
            xp_gather(l)
            for k in range(8): e(f"v_cvt_pk_bf16_f32 v{32+k}, v{vX+2*k}, v{vX+2*k+1}")
            xoff(sT)
            e(f"v_lshlrev_b32 v{vT}, 4, v{vLANE}\nv_mov_b32 v{vT+1}, {OOB}\nv_cndmask_b32 v{vT}, v{vT+1}, v{vT}, s[{sM56}:{sM56+1}]")
            g.vmem(f"buffer_store_dwordx4 v[32:35], v{vT}, s[{S_OUT}:{S_OUT+3}], s{sT} offen")
            g.vmem(f"buffer_store_dwordx4 v[36:39], v{vT}, s[{S_OUT}:{S_OUT+3}], s{sT} offen offset:896")
            g.ts("out stored")
        else:
            g.nop(2)
            xp_gather(l, lambda: (g.allow(KP[2]), read_w('WQ', (l+1) & 1, WQF, 124, 125)))
            s2_compute(l+1)
            g.ts(f"Q{l+1} stored")
            g.nop(2)
            g.allow(KP[3])
            early_moves(l+1, c['PRE_Q'][l])
    e("Lfin:")
    assert not g.q and len(g.free) == c['DEPTH'], (g.q, g.free)
    if c['TS']:
        g.ts("end")
        e(f"""s_lshl_b32 s{sT}, s2, 2
              s_add_u32 s{sT}, s{sT}, s{sWV}
              s_lshl_b32 s{sT}, s{sT}, 8
              s_add_u32 s{sT}, s{sT}, {W_TS_ABS}
              v_lshlrev_b32 v{vT}, 2, v{vLANE}
              buffer_store_dword v{vTS}, v{vT}, s[{S_WS}:{S_WS+3}], s{sT} offen""")
    e("Lend:")
    body = "\n".join(g.L)
    hdr = f"""; {NAME}
; @launch grid=(256,1,1) block=(256,1,1) lds={L_END}
.amdgcn_target "amdgcn-amd-amdhsa--gfx950"
.text
.globl {NAME}_kernel
.p2align 8
.type {NAME}_kernel,@function
{NAME}_kernel:
"""
    ftr = f"""
s_endpgm
.section .rodata,"a"
.p2align 6
.amdhsa_kernel {NAME}_kernel
  .amdhsa_next_free_vgpr 512
  .amdhsa_next_free_sgpr 102
  .amdhsa_accum_offset 256
  .amdhsa_group_segment_fixed_size 0
  .amdhsa_kernarg_size 104
  .amdhsa_user_sgpr_count 2
  .amdhsa_user_sgpr_kernarg_segment_ptr 1
  .amdhsa_system_sgpr_workgroup_id_x 1
.end_amdhsa_kernel
"""
    return hdr + body + ftr, g.tsnames

if __name__ == "__main__":
    import json
    out = sys.argv[1]
    cfg = json.loads(sys.argv[2]) if len(sys.argv) > 2 else {}
    s, names = build(cfg)
    open(out, "w").write(s)
    if names: json.dump(names, open(out + ".ts.json", "w"))
    print(out, len(s), "bytes", len(s.splitlines()), "lines")
```

```python
import sys, math, struct

NAME = "interleave_layers__gqa_block_cached__gqa_block_cached__decode"

DEFAULT = dict(
    CSTR=8192, TSTR=131072,
    ROT=0,
    NH=(6, 5),
    XH3=0,
    STAG=24,
    KVPOL="nt", WPOL="",
    MV0=6, MV0A=3,
    KP=(0, 2, 0, 0),
    PRE_Q=(0, 0, 0),
    TS=False,
    SPIN=200000, SPINL=4000000,
    SLEEP=1,
    DEPTH=2,
    MPOLL=1, TSP=0, SOLO=0,
    MLX=1,
    XPL=1,
    OPL=1,
    LPOL="auto",
    XPOL="sc1",
    XS2=1,
    MVBP=1,
    MVB=0,
    REMAP=0,
    TSL=-1,
)

S_KA, S_VA, S_KB, S_VB = 4, 8, 12, 16
S_WQA, S_WOA, S_WQB, S_WOB = 20, 24, 28, 32
S_WS, S_DBG, S_X, S_OUT = 36, 40, 44, 48
sWV, sHKV, sG, sI = 52, 53, 54, 55
sRING, sTOFF, sWOOFF, sWQOFF = 56, 57, 58, 59
sGB, sOPRD, sMLRD, sXPWR = 60, 61, 62, 63
sQRD, sSPIN, sC, sT = 64, 65, 68, 69
sM56 = 66
sMC2 = 70
sT2, sT3, sROT, sQWR = 72, 73, 74, 75
sOPWR, sMLWR, sBB, sT4 = 76, 77, 78, 79
sTS = 80
sWQ, sSPINL, sFLO, sFLP = 82, 83, 84, 85
sANY = 90
sCNT = 91
sXSB = 94
sXCC, sLOC = 92, 93
sLO, sHI, sNQ, sPB = 86, 87, 88, 89
vTS = 0
vLANE = 1
vDVO = 2
vAL = 6
vX = 14
vT = 30
vQ = 32
vS = 64
vST = 128
L_WO = 65536
L_WQ = L_WO + 32768
L_OBUF = L_WQ + 28672
L_MLBUF = L_OBUF + 4*2048
L_FLAG = L_MLBUF + 64
L_STG = L_FLAG + 16
L_WFL = L_STG + 8
L_RBUF = L_MLBUF + 256
L_RBUF2 = L_RBUF + 1024
L_XN = L_RBUF2 + 1024
L_QBUF = L_XN + 8192
L_XB = L_QBUF + 2048
L_END = L_XB + 512
GSZ = 0x180000
HSZ = 0x30000
W_ML = 0x20000
W_XP = 0x21000
W_Q = 0x25000
W_Q0 = 0x300000
W_XS = 0x310000
W_TS_ABS = 0x340000
WS_SIZE = 0x400000
OOB = 0x80000000

def vr(a, n=1):
    return f"v{a}" if n == 1 else f"v[{a}:{a+n-1}]"
def f32(x):
    return "0x%08x" % struct.unpack("<I", struct.pack("<f", x))[0]

class Home:
    def __init__(self, kind, base): self.kind, self.base = kind, base
    def r(self, j): return f"{self.kind}[{self.base+4*j}:{self.base+4*j+3}]"
HOMES = [Home('a', 32*k) for k in range(8)] + [Home('v', 160+32*k) for k in range(3)]

class G:
    def __init__(self, cfg):
        self.c = cfg
        self.L = []
        self.vm = []
        self.free = list(range(cfg['DEPTH']))
        self.q = []
        self.slot = {}
        self.mode = None
        self.nlab = 0
        self.nts = 0
        self.tsnames = []
        self.nsync = 0
        self.klimit = None
    def e(self, s):
        for ln in s.split("\n"):
            ln = ln.strip()
            if ln: self.L.append("    " + ln if not ln.endswith(":") else ln)
    def cmt(self, s): self.L.append("    ; " + s)
    def lab(self, p):
        self.nlab += 1
        return f"L{p}_{self.nlab}"
    def nop(self, n):
        while n > 0:
            k = min(n, 8); self.e(f"s_nop {k-1}"); n -= k
    def vmem(self, s, tok=None):
        self.e(s); self.vm.append(tok)
    def lstore(self, ss, toks, pol):
        if pol != "auto":
            for s_, t in zip(ss, toks): self.vmem(f"{s_} {pol}", t)
            return
        ls, ld = self.lab("wt"), self.lab("wd")
        self.e(f"s_cmp_eq_u32 s{sLOC}, 0\ns_cbranch_scc1 {ls}")
        for s_ in ss: self.e(s_)
        self.e(f"s_branch {ld}\n{ls}:")
        for s_, t in zip(ss, toks): self.vmem(f"{s_} sc1", t)
        self.e(f"{ld}:")
    def wait_tok(self, tok):
        idx = None
        for k in range(len(self.vm)-1, -1, -1):
            if self.vm[k] == tok: idx = k; break
        if idx is None: return
        n = len(self.vm) - 1 - idx
        self.e(f"s_waitcnt vmcnt({min(n,63)})")
        self.vm = self.vm[idx+1:]
    def wait_all(self):
        self.e("s_waitcnt vmcnt(0)"); self.vm = []
    def lg(self, n=0): self.e(f"s_waitcnt lgkmcnt({n})")
    def tskeep(self, name):
        L = self.c['TSP'] - 1
        return name in ("start", "end") or name.startswith("V") or f"_{L}" in name or name.startswith((f"q{L+1}", f"OP{L}", f"XP{L}", f"Q{L+1}", f"q{L} ready"))
    def ts(self, name, fine=False):
        if not self.c['TS']: return
        L = self.c['TSL']
        if L >= 0:
            pre = []
            for M in (L-1, L):
                pre += [f"V{M} ", f"OP{M} ", f"S1_{M}", f"S2_{M}", f"XS_{M}", f"Q{M+1}", f"XP{M}", f"q{M+1} "]
            keep = (fine and name[0] in "kv") or name in ("start", "end") or name.startswith(tuple(pre)) or name.startswith(f"q{L} ")
            if not keep: return
        elif self.c['TSP']:
            if not self.tskeep(name): return
        elif fine: return
        assert self.nts < 64
        self.e(f"s_waitcnt lgkmcnt(0)\ns_memrealtime s[{sTS}:{sTS+1}]\ns_waitcnt lgkmcnt(0)\nv_writelane_b32 v{vTS}, s{sTS}, {self.nts}")
        self.tsnames.append(name); self.nts += 1
    def pair_sync(self):
        self.nsync += 1
        k = self.nsync
        lp, ld = self.lab("ps"), self.lab("pd")
        self.e(f"""s_waitcnt lgkmcnt(0)
                   v_mov_b32 v{vT}, s{sFLO}
                   v_mov_b32 v{vT+1}, {k}
                   ds_write_b32 v{vT}, v{vT+1}
                   v_mov_b32 v{vT}, s{sFLP}
                   {lp}:
                   ds_read_b32 v{vT+1}, v{vT}
                   s_waitcnt lgkmcnt(0)
                   v_cmp_gt_u32 vcc, {k}, v{vT+1}
                   s_cbranch_vccz {ld}
                   s_cmp_eq_u32 s{sSPINL}, 0
                   s_cbranch_scc1 {ld}
                   s_sub_u32 s{sSPINL}, s{sSPINL}, 1
                   s_branch {lp}
                   {ld}:""")
    def pump(self, n=99):
        while self.free and self.q and n > 0:
            it = self.q[0]
            if it[0] == 'K' and self.klimit is not None and it[1] == self.klimit[0]:
                if self.klimit[1] <= 0: break
                self.klimit[1] -= 1
            self.q.pop(0); sl = self.free.pop(0)
            self.slot[it] = sl
            self.issue(it, sl); n -= 1
    def allow(self, n):
        if self.klimit is not None: self.klimit[1] += n
        self.pump()
    def release(self, it, pump=True):
        self.free.append(self.slot.pop(it))
        if pump: self.pump()
    def issue(self, it, sl):
        kind, l = it[0], it[1]
        c = self.c
        if kind in ('K', 'V'):
            t = it[2]
            srd = {('K',0):S_KA, ('V',0):S_VA, ('K',1):S_KB, ('V',1):S_VB}[(kind, l & 1)]
            self.e(f"s_add_u32 m0, s{sRING}, {sl*8192}")
            if c['ROT']:
                self.e(f"s_add_u32 s{sT}, s{sROT}, {t*c['TSTR']}\ns_and_b32 s{sT}, s{sT}, {16*c['TSTR']-1}\ns_add_u32 s{sT}, s{sT}, s{sTOFF}")
            else:
                self.e(f"s_add_u32 s{sT}, s{sTOFF}, {t*c['TSTR']}")
            for half in range(2):
                if half:
                    self.e(f"s_add_u32 m0, s{sRING}, {sl*8192+4096}\ns_add_u32 s{sT}, s{sT}, 4096")
                for k in range(4):
                    self.vmem(f"buffer_load_dwordx4 v{vDVO+k}, s[{srd}:{srd+3}], s{sT} offen offset:{k*1024} {c['KVPOL']} lds", it)
        else:
            raise AssertionError(it)
    def setmode(self, m):
        if self.mode == m: return
        self.mode = m
        a, t, u = vAL, vAL+1, vAL+2
        if m == 'K':
            self.e(f"""v_and_b32 v{t}, 15, v{vLANE}
                       v_lshlrev_b32 v{a}, 9, v{t}
                       v_and_b32 v{t}, 7, v{t}
                       v_lshl_add_u32 v{a}, v{t}, 5, v{a}
                       v_lshrrev_b32 v{t}, 5, v{vLANE}
                       v_lshl_add_u32 v{a}, v{t}, 8, v{a}
                       v_bfe_u32 v{t}, v{vLANE}, 4, 1
                       v_lshl_add_u32 v{a}, v{t}, 4, v{a}
                       v_add_u32 v{a}, s{sRING}, v{a}""")
        else:
            self.e(f"""v_lshrrev_b32 v{t}, 2, v{vLANE}
                       v_lshlrev_b32 v{a}, 9, v{t}
                       v_and_b32 v{t}, 7, v{t}
                       v_lshl_add_u32 v{a}, v{t}, 5, v{a}
                       v_and_b32 v{t}, 3, v{vLANE}
                       v_lshl_add_u32 v{a}, v{t}, 3, v{a}
                       v_add_u32 v{a}, s{sRING}, v{a}""")
        for j in range(1, 8): self.e(f"v_xor_b32 v{vAL+j}, {j*32}, v{a}")
    def k_read(self, it, dst):
        self.setmode('K')
        self.wait_tok(it)
        sl = self.slot[it]
        for j in range(8):
            self.e(f"ds_read_b128 {dst(j)}, v{vAL+j} offset:{sl*8192}")
    def k_move(self, it, home):
        self.cmt(f"move {it} -> home {home.kind}{home.base}")
        self.k_read(it, home.r)
        self.lg(0)
        self.release(it)
    def k_mfma(self, t, src, waits):
        for j in range(8):
            if waits: self.lg(7-j)
            cc = "0" if j == 0 else vr(vS+4*t, 4)
            self.e(f"v_mfma_f32_16x16x32_bf16 {vr(vS+4*t,4)}, {src(j)}, {vr(vQ+4*j,4)}, {cc}")
    def k_ring(self, it, t, home=None):
        self.cmt(f"consume {it}")
        src = home.r if home else (lambda j: vr(vST+4*j, 4))
        self.k_read(it, src)
        self.k_mfma(t, src, True)
        self.release(it)
    def v_ring(self, it, u):
        self.cmt(f"consume {it}")
        self.setmode('V')
        self.wait_tok(it)
        sl = self.slot[it]
        def rd(tp):
            self.e(f"ds_read_b64_tr_b16 {vr(vST+2*tp,2)}, v{vAL+(tp&7)} offset:{sl*8192+(tp>>3)*256}")
        for tp in range(8): rd(tp)
        for tp in range(16):
            if tp < 8:
                rd(8+tp); self.lg(8)
            else:
                self.lg(15-tp)
            cc = "0" if u == 0 else vr(vS+4*tp, 4)
            self.e(f"v_mfma_f32_16x16x16_bf16 {vr(vS+4*tp,4)}, {vr(vST+2*tp,2)}, {vr(vQ+2*u,2)}, {cc}")
        self.release(it)
    def xrow_reduce(self, vs, tmps, op):
        for sw in ("v_permlane32_swap_b32", "v_permlane16_swap_b32"):
            for v, t in zip(vs, tmps): self.e(f"v_mov_b32 v{t}, v{v}")
            self.nop(2 if len(vs) == 1 else 1)
            for v, t in zip(vs, tmps): self.e(f"{sw} v{t}, v{v}")
            self.nop(2 if len(vs) == 1 else 1)
            for v, t in zip(vs, tmps): self.e(f"{op} v{v}, v{v}, v{t}")
    def dpp_reduce(self, vs, op, pats):
        for p in pats:
            self.nop(max(0, 3 - len(vs)))
            for v in vs:
                self.e(f"{op}_dpp v{v}, v{v}, v{v} {p} row_mask:0xf bank_mask:0xf")
    def wave_sum(self, vs, tmps):
        self.dpp_reduce(vs, "v_add_f32", [f"row_ror:{r}" for r in (8, 4, 2, 1)])
        self.nop(1)
        self.xrow_reduce(vs, tmps, "v_add_f32")
    def poll(self, issue, check, name, after=None):
        lp, ld = self.lab("poll"+name), self.lab("done"+name)
        issue()
        if after: after()
        self.wait_tok('poll')
        check()
        self.e(f"s_cbranch_vccz {ld}")
        saved = list(self.vm)
        self.e(f"{lp}:")
        self.e(f"s_cmp_eq_u32 s{sSPIN}, 0\ns_cbranch_scc1 {ld}\ns_sub_u32 s{sSPIN}, s{sSPIN}, 1\ns_sleep {self.c['SLEEP']}")
        issue()
        self.e("s_waitcnt vmcnt(0)")
        check()
        self.e(f"s_cbranch_vccnz {lp}")
        self.e(f"{ld}:")
        self.vm = saved
    def mpoll(self, parts, name, after=None):
        if not self.c['MPOLL']:
            regs = [r for p in parts for r in p[0]]
            def issue():
                for p in parts: p[1]()
            return self.poll(issue, lambda: self.check_sent(regs, vT+1), name, after)
        lp, ld = self.lab("poll"+name), self.lab("done"+name)
        for p in parts: p[1]()
        if self.c['TSP']: self.ts(name + " iss", True)
        if after: after()
        self.wait_tok('poll')
        if self.c['TSP']:
            self.ts(name + " 1st", True)
            self.e(f"s_mov_b32 s{sCNT}, 0")
        saved = list(self.vm)
        self.e(f"{lp}:")
        if len(parts) > 1: self.e(f"s_mov_b32 s{sANY}, 0")
        for k, (regs, issue) in enumerate(parts):
            sk = self.lab("sk"+name) if len(parts) > 1 else ld
            self.check_sent(regs, vT+1)
            self.e(f"s_cbranch_vccz {sk}\ns_mov_b64 exec, vcc")
            issue()
            self.e("s_mov_b64 exec, -1")
            if len(parts) > 1: self.e(f"s_mov_b32 s{sANY}, 1\n{sk}:")
        if len(parts) > 1: self.e(f"s_cmp_eq_u32 s{sANY}, 0\ns_cbranch_scc1 {ld}")
        self.e(f"s_waitcnt vmcnt(0)\ns_cmp_eq_u32 s{sSPIN}, 0\ns_cbranch_scc1 {ld}\ns_sub_u32 s{sSPIN}, s{sSPIN}, 1")
        if self.c['SLEEP']: self.e(f"s_sleep {self.c['SLEEP']}")
        if self.c['TSP']: self.e(f"s_add_u32 s{sCNT}, s{sCNT}, 1")
        self.e(f"s_branch {lp}")
        self.e(f"{ld}:")
        if self.c['TSP'] and self.tskeep(name):
            self.e(f"v_writelane_b32 v{vTS}, s{sCNT}, {self.nts}")
            self.tsnames.append(name + " cnt"); self.nts += 1
        self.vm = saved
    def check_sent(self, regs, t):
        regs = list(regs)
        self.e(f"v_max3_u32 v{t}, v{regs[0]}, v{regs[1]}, v{regs[2]}")
        k = 3
        while k < len(regs):
            if k+1 < len(regs):
                self.e(f"v_max3_u32 v{t}, v{t}, v{regs[k]}, v{regs[k+1]}"); k += 2
            else:
                self.e(f"v_max_u32 v{t}, v{t}, v{regs[k]}"); k += 1
        self.e(f"v_cmp_eq_u32 vcc, -1, v{t}")

P8 = ["quad_perm:[1,0,3,2]", "quad_perm:[2,3,0,1]", "row_half_mirror"]

def build(cfg=None):
    c = dict(DEFAULT); c.update(cfg or {})
    g = G(c); e = g.e
    NH = c['NH']
    homeA = HOMES[:NH[0]]; homeB = HOMES[NH[0]:NH[0]+NH[1]]
    assert len(homeB) == NH[1]
    plan = {}
    for l in range(4):
        hm = homeA if l % 2 == 0 else homeB
        p = []
        for t in range(16):
            if t < len(hm): p.append((hm[t], l < 2))
            else: p.append((None, True))
        if l == 3:
            for k in range(min(c['XH3'], len(homeA))):
                t = len(hm) + k
                if t < 16: p[t] = (homeA[k], True)
        plan[l] = p

    e(f"s_cmp_ge_u32 s2, 256\ns_cbranch_scc1 Lend")
    if c['REMAP']:
        e("s_and_b32 s3, s2, 7\ns_lshl_b32 s3, s3, 3\ns_bfe_u32 s4, s2, 0x30003\ns_or_b32 s3, s3, s4\ns_and_b32 s2, s2, 0xc0\ns_or_b32 s2, s2, s3")
    e("s_load_dwordx16 s[72:87], s[0:1], 0\ns_load_dwordx8 s[88:95], s[0:1], 64\ns_load_dwordx2 s[96:97], s[0:1], 96")
    e(f"v_lshrrev_b32 v{vT}, 6, v0\nv_and_b32 v{vLANE}, 63, v0\ns_nop 1\nv_readfirstlane_b32 s{sWV}, v{vT}")
    e(f"s_and_b32 s{sHKV}, s2, 7\ns_lshr_b32 s{sI}, s2, 3\ns_lshr_b32 s{sG}, s{sWV}, 1")
    e(f"s_mov_b32 s{sSPIN}, {c['SPIN']}\ns_mov_b32 s{sC}, {f32(0.0625*math.log2(math.e))}")
    e(f"s_mov_b32 s{sM56}, -1\ns_mov_b32 s{sM56+1}, 0x00ffffff\ns_mov_b32 s{sMC2}, 0x00030003\ns_mov_b32 s{sMC2+1}, 0x00030003")
    e(f"""v_lshrrev_b32 v{vT}, 5, v{vLANE}
          v_and_b32 v{vT+1}, 31, v{vLANE}
          v_lshlrev_b32 v{vDVO+1}, 1, v{vT}
          v_xor_b32 v{vT+1}, v{vT+1}, v{vDVO+1}
          v_lshlrev_b32 v{vT+1}, 4, v{vT+1}
          v_lshl_add_u32 v{vDVO}, v{vT}, 9, v{vT+1}
          v_xor_b32 v{vDVO+1}, 64, v{vDVO}
          v_xor_b32 v{vDVO+2}, 0x80, v{vDVO}
          v_xor_b32 v{vDVO+3}, 0xc0, v{vDVO}""")
    assert c['DEPTH'] <= 2
    e(f"s_mul_i32 s{sRING}, s{sWV}, {c['DEPTH']*8192}")
    e(f"v_mov_b32 v{vTS}, 0")
    e(f"v_and_b32 v{vT}, 7, v{vLANE}\nv_lshlrev_b32 v{vT}, 2, v{vT}\nv_add_u32 v{vT}, {L_FLAG}, v{vT}\nds_write_b32 v{vT}, v{vTS}")
    e("s_waitcnt lgkmcnt(0)\ns_barrier")
    e(f"s_lshr_b32 s3, s{sI}, 3\ns_lshl_b32 s{sT}, s{sG}, 2\ns_add_u32 s{sT}, s{sT}, s3")
    e(f"s_lshl_b32 s{sT}, s{sT}, 3\ns_add_u32 s{sT}, s{sT}, s{sHKV}\ns_lshl_b32 s3, s{sT}, 21")
    def srd(dst, src, size, addoff=False):
        if addoff:
            e(f"s_add_u32 s{dst}, s{src}, s3\ns_addc_u32 s{dst+1}, s{src+1}, 0\ns_and_b32 s{dst+1}, s{dst+1}, 0xffff")
        else:
            e(f"s_mov_b32 s{dst}, s{src}\ns_and_b32 s{dst+1}, s{src+1}, 0xffff")
        e(f"s_mov_b32 s{dst+2}, {size}\ns_mov_b32 s{dst+3}, 0x00020000")
    srd(S_KA, 74, 1 << 21, True); srd(S_VA, 76, 1 << 21, True)
    srd(S_KB, 84, 1 << 21, True); srd(S_VB, 86, 1 << 21, True)
    srd(S_WQA, 78, 448*4096*2); srd(S_WOA, 80, 448*4096*2)
    srd(S_WQB, 88, 448*4096*2); srd(S_WOB, 90, 448*4096*2)
    srd(S_WS, 96, WS_SIZE); srd(S_DBG, 94, 256); srd(S_X, 72, 7168); srd(S_OUT, 92, 7168)
    e(f"s_lshr_b32 s{sBB}, s{sI}, 3\ns_and_b32 s{sWQ}, s{sWV}, 1\ns_mov_b32 s{sSPINL}, {c['SPINL']}")
    e(f"s_lshl_b32 s{sFLO}, s{sWV}, 2\ns_add_u32 s{sFLO}, s{sFLO}, {L_FLAG}\ns_xor_b32 s{sFLP}, s{sFLO}, 4")
    e(f"s_mov_b32 s{sLO}, 0x00003f80\ns_mov_b32 s{sHI}, 0x3f800000\ns_min_u32 s{sNQ}, s{sI}, 27")
    e(f"s_getreg_b32 s{sXCC}, hwreg(HW_REG_XCC_ID, 0, 4)\ns_lshl_b32 s{sXCC}, s{sXCC}, 1\ns_or_b32 s{sXCC}, s{sXCC}, 1\ns_mov_b32 s{sLOC}, 0")
    assert L_FLAG % 8 == 0
    e(f"s_and_b32 s{sT}, s{sI}, 7\ns_lshl_b32 s{sT}, s{sT}, 1\ns_add_u32 s{sT}, s{sT}, s{sWQ}\ns_mul_i32 s{sTOFF}, s{sT}, {c['CSTR']}")
    if c['ROT']:
        e(f"s_lshr_b32 s{sT}, s2, 3\ns_add_u32 s{sT}, s{sT}, s{sHKV}\ns_mul_i32 s{sT}, s{sT}, {c['ROT']}\ns_and_b32 s{sT}, s{sT}, 15\ns_mul_i32 s{sROT}, s{sT}, {c['TSTR']}")
    e(f"s_lshl_b32 s{sT}, s{sHKV}, 1\ns_add_u32 s{sT}, s{sT}, s{sWQ}\ns_mul_i32 s{sWOOFF}, s{sT}, {256*896}\ns_lshl_b32 s{sT}, s{sNQ}, 5\ns_add_u32 s{sWOOFF}, s{sWOOFF}, s{sT}")
    e(f"s_mul_i32 s{sWQOFF}, s{sWQ}, {224*8192}\ns_lshl_b32 s{sT}, s{sHKV}, 10\ns_add_u32 s{sWQOFF}, s{sWQOFF}, s{sT}\ns_lshl_b32 s{sT}, s{sI}, 5\ns_add_u32 s{sWQOFF}, s{sWQOFF}, s{sT}")
    e(f"s_mul_i32 s{sGB}, s{sG}, {GSZ}")
    e(f"s_mul_i32 s{sT}, s{sHKV}, {HSZ}\ns_add_u32 s{sOPRD}, s{sGB}, s{sT}")
    if c['OPL'] == 0:
        e(f"s_lshr_b32 s{sT}, s{sI}, 4\ns_lshl_b32 s{sT}, s{sT}, 13\ns_add_u32 s{sOPWR}, s{sOPRD}, s{sT}\ns_and_b32 s{sT}, s{sI}, 15\ns_lshl_b32 s{sT}, s{sT}, 6\ns_add_u32 s{sOPWR}, s{sOPWR}, s{sT}")
        e(f"s_lshl_b32 s{sT}, s{sWQ}, 14\ns_add_u32 s{sOPWR}, s{sOPWR}, s{sT}")
    else:
        e(f"s_lshl_b32 s{sT}, s{sI}, 9\ns_add_u32 s{sOPWR}, s{sOPRD}, s{sT}\ns_lshl_b32 s{sT}, s{sWQ}, 14\ns_add_u32 s{sOPWR}, s{sOPWR}, s{sT}")
    MLS = 8192 if c['MLX'] else 512
    if c['MLX']:
        e(f"s_add_u32 s{sMLRD}, s{sOPRD}, {0x28000}\ns_lshl_b32 s{sT}, s{sWQ}, 7\ns_add_u32 s{sMLRD}, s{sMLRD}, s{sT}")
        e(f"s_lshl_b32 s{sT}, s{sI}, 8\ns_add_u32 s{sMLWR}, s{sMLRD}, s{sT}")
    else:
        e(f"s_add_u32 s{sMLRD}, s{sOPRD}, {W_ML}\ns_lshl_b32 s{sT}, s{sWQ}, 3\ns_add_u32 s{sMLRD}, s{sMLRD}, s{sT}")
        e(f"s_lshl_b32 s{sT}, s{sI}, 4\ns_add_u32 s{sMLWR}, s{sMLRD}, s{sT}")
    e(f"s_lshl_b32 s{sT}, s{sNQ}, {7 if c['XPL'] else 5}\ns_add_u32 s{sXPWR}, s{sOPRD}, s{sT}\ns_add_u32 s{sXPWR}, s{sXPWR}, {W_XP}")
    if c['XPL']: e(f"s_lshl_b32 s{sQRD}, s{sBB}, 5\ns_lshl_b32 s{sQWR}, s{sI}, 7")
    else:        e(f"s_lshl_b32 s{sQRD}, s{sBB}, 10\ns_lshl_b32 s{sQWR}, s{sI}, 5")
    e(f"s_lshl_b32 s{sT}, s{sG}, 3\ns_add_u32 s{sT}, s{sT}, s{sHKV}\ns_mul_i32 s{sXSB}, s{sT}, 0x3000\ns_add_u32 s{sXSB}, s{sXSB}, {W_XS}")
    def qbase(l, dst, rel):
        if l == 0:
            e(f"s_lshl_b32 s{dst}, s{sG}, 3\ns_add_u32 s{dst}, s{dst}, s{sHKV}\ns_lshl_b32 s{dst}, s{dst}, 12\ns_add_u32 s{dst}, s{dst}, {W_Q0}\ns_add_u32 s{dst}, s{dst}, s{rel}")
        else:
            e(f"s_add_u32 s{dst}, s{sOPRD}, {W_Q+(l-1)*4096}\ns_add_u32 s{dst}, s{dst}, s{rel}")

    Q = []
    for l in range(4):
        for t in range(16):
            if plan[l][t][1]: Q.append(('K', l, t))
        for t in range(16): Q.append(('V', l, t))
    if c['MVB']:
        pre = [('K', 1, t) for t in range(c['MVB'])]
        Q = [x for x in Q if x not in pre]
        Q = Q[:c['MV0']] + pre + Q[c['MV0']:]
    g.q = Q

    g.ts("start")
    def xoff(dst):
        e(f"s_lshl_b32 s{dst}, s{sG}, 1\ns_add_u32 s{dst}, s{dst}, s{sWQ}\ns_mul_i32 s{dst}, s{dst}, 1792")
    xoff(sT)
    e(f"v_lshlrev_b32 v{vT}, 4, v{vLANE}\nv_mov_b32 v{vT+1}, {OOB}\nv_cndmask_b32 v{vT}, v{vT+1}, v{vT}, s[{sM56}:{sM56+1}]")
    g.vmem(f"buffer_load_dwordx4 {vr(vST,4)}, v{vT}, s[{S_X}:{S_X+3}], s{sT} offen", 'x')
    g.vmem(f"buffer_load_dwordx4 {vr(vST+4,4)}, v{vT}, s[{S_X}:{S_X+3}], s{sT} offen offset:896", 'x')
    def w_voff(kind, dst, tmp):
        if kind == 'WO': e(f"v_lshrrev_b32 v{dst}, 1, v{vLANE}\nv_mul_u32_u24 v{dst}, 896, v{dst}")
        else:            e(f"v_lshrrev_b32 v{dst}, 1, v{vLANE}\nv_lshlrev_b32 v{dst}, 13, v{dst}")
        e(f"v_and_b32 v{tmp}, 1, v{vLANE}\nv_lshl_add_u32 v{dst}, v{tmp}, 4, v{dst}")
    def w_load(kind, p, va, tok):
        srd = {('WO',0):S_WOA, ('WO',1):S_WOB, ('WQ',0):S_WQA, ('WQ',1):S_WQB}[(kind, p)]
        n, step, base = (8, 32*896, sWOOFF) if kind == 'WO' else (7, 32*8192, sWQOFF)
        lb, hs = (L_WO + p*16384, 8192) if kind == 'WO' else (L_WQ + p*14336, 7168)
        e(f"s_mul_i32 s{sT2}, s{sWQ}, {hs}\ns_add_u32 s{sT2}, s{sT2}, {lb}")
        for k in range(n):
            e(f"s_add_u32 m0, s{sT2}, {k*1024}\ns_add_u32 s{sT}, s{base}, {k*step}")
            g.vmem(f"buffer_load_dwordx4 v{va}, s[{srd}:{srd+3}], s{sT} offen {c['WPOL']} lds", tok)
    w_voff('WQ', vT, vT+1)
    e(f"s_mul_i32 s{sT2}, s{sWQ}, 7168\ns_add_u32 s{sT2}, s{sT2}, {L_WQ}")
    for k in range(4):
        e(f"""s_lshl_b32 s{sT3}, s{sG}, 2
              s_add_u32 s{sT3}, s{sT3}, {k}
              s_min_u32 s{sT3}, s{sT3}, 6
              s_lshl_b32 s{sT}, s{sT3}, 10
              s_add_u32 m0, s{sT2}, s{sT}
              s_lshl_b32 s{sT}, s{sT3}, 18
              s_add_u32 s{sT}, s{sT}, s{sWQOFF}""")
        g.vmem(f"buffer_load_dwordx4 v{vT}, s[{S_WQA}:{S_WQA+3}], s{sT} offen {c['WPOL']} lds", 'wqa')
    e(f"s_mul_i32 s{sT}, s{sI}, 6144\ns_add_u32 s{sT}, s{sT}, s{sOPRD}\ns_lshl_b32 s{sT2}, s{sWQ}, 10\ns_add_u32 s{sT}, s{sT}, s{sT2}")
    e(f"v_lshlrev_b32 v{vT}, 4, v{vLANE}")
    for k in range(4): e(f"v_mov_b32 v{vST+8+k}, -1")
    for k in range(3):
        g.vmem(f"buffer_store_dwordx4 {vr(vST+8,4)}, v{vT}, s[{S_WS}:{S_WS+3}], s{sT} offen offset:{k*2048 if k < 2 else 0} sc1" if k < 2 else
               f"buffer_store_dwordx4 {vr(vST+8,4)}, v{vT}, s[{S_WS}:{S_WS+3}], s{sT2} offen sc1", 'fill')
        if k == 1: e(f"s_add_u32 s{sT2}, s{sT}, 4096")
    if c['XS2']:
        e(f"""v_lshrrev_b32 v{vT}, 3, v{vLANE}
              v_lshlrev_b32 v{vT}, 12, v{vT}
              v_and_b32 v{vT+1}, 7, v{vLANE}
              v_lshl_add_u32 v{vT}, v{vT+1}, 4, v{vT}
              s_cmp_eq_u32 s{sWQ}, 0
              s_cselect_b32 s{sT}, 24, 0
              v_cmp_gt_u32 vcc, s{sT}, v{vLANE}
              v_mov_b32 v{vT+1}, {OOB}
              s_lshl_b32 s{sT}, s{sI}, 7
              s_add_u32 s{sT}, s{sT}, s{sXSB}
              v_cndmask_b32 v{vT}, v{vT+1}, v{vT}, vcc""")
        g.vmem(f"buffer_store_dwordx4 {vr(vST+8,4)}, v{vT}, s[{S_WS}:{S_WS+3}], s{sT} offen sc1", 'fill')
    g.pump()
    g.wait_tok('x')
    for k in range(8):
        e(f"v_lshlrev_b32 v{vX+2*k}, 16, v{vST+k}\nv_and_b32 v{vX+2*k+1}, 0xffff0000, v{vST+k}")

    WOF = 64
    WQF = 96
    def read_w(kind, p, dst, t0, t1):
        g.cmt(f"read {kind}{p} fragments")
        nst = 8 if kind == 'WO' else 7
        lb, hs = (L_WO + p*16384, 8192) if kind == 'WO' else (L_WQ + p*14336, 7168)
        e(f"""v_lshrrev_b32 v{t0}, 4, v{vLANE}
              v_lshlrev_b32 v{t0}, 8, v{t0}
              v_bfe_u32 v{t1}, v{vLANE}, 2, 2
              v_lshl_add_u32 v{t0}, v{t1}, 5, v{t0}
              v_and_b32 v{t1}, 3, v{vLANE}
              v_lshl_add_u32 v{t0}, v{t1}, 3, v{t0}
              s_mul_i32 s{sT}, s{sWQ}, {hs}
              s_add_u32 s{sT}, s{sT}, {lb}
              v_add_u32 v{t0}, s{sT}, v{t0}""")
        n = 0
        for st in range(nst):
            for hf in range(2):
                e(f"ds_read_b64_tr_b16 {vr(dst+4*st+2*hf,2)}, v{t0} offset:{st*1024+hf*128}")
                n += 1
                if n == 8: g.lg(4)
        g.lg(0)
    def lds_wait(addr_code, val):
        lp, ld = g.lab("lw"), g.lab("lwd")
        addr_code()
        e(f"""{lp}:
              ds_read_b32 v{vT+1}, v{vT}
              s_waitcnt lgkmcnt(0)
              v_cmp_gt_u32 vcc, {val}, v{vT+1}
              s_cbranch_vccz {ld}
              s_cmp_eq_u32 s{sSPINL}, 0
              s_cbranch_scc1 {ld}
              s_sub_u32 s{sSPINL}, s{sSPINL}, 1
              s_sleep 2
              s_branch {lp}
              {ld}:""")

    def reduce_store(rbuf, voff_code, soff, tok, extra_cond=None, pol="sc1"):
        R = 64
        t = vT
        e(f"""s_lshl_b32 s{sT}, s{sG}, 9
              s_add_u32 s{sT}, s{sT}, {rbuf}
              v_and_b32 v{t}, 7, v{vLANE}
              v_lshlrev_b32 v{t}, 5, v{t}
              v_add_u32 v{t}, s{sT}, v{t}""")
        for w in range(2):
            e(f"ds_read_b128 {vr(R+8*w,4)}, v{t} offset:{w*256}\nds_read_b128 {vr(R+8*w+4,4)}, v{t} offset:{w*256+16}")
        voff_code(t+1, R+16)
        e(f"s_cmp_eq_u32 s{sWQ}, 0\ns_cselect_b32 s{sT}, 8, 0")
        if extra_cond: extra_cond()
        e(f"""v_cmp_gt_u32 vcc, s{sT}, v{vLANE}
              v_mov_b32 v{R+16}, {OOB}
              s_nop 0
              v_cndmask_b32 v{t+1}, v{R+16}, v{t+1}, vcc""")
        g.lg(0)
        for k in range(8): e(f"v_add_f32 v{R+k}, v{R+k}, v{R+8+k}")
        for k in range(4): e(f"v_cvt_pk_bf16_f32 v{R+8+k}, v{R+2*k}, v{R+2*k+1}")
        for k in range(4): e(f"v_min_u32 v{R+8+k}, -2, v{R+8+k}")
        g.lstore([f"buffer_store_dwordx4 {vr(R+8,4)}, v{t+1}, s[{S_WS}:{S_WS+3}], s{soff} offen"], [tok], pol)

    def s2_compute(l):
        g.cmt(f"S2 compute -> Q[{l}]")
        d = 64
        t0, t1, u0, u1 = 80, 81, 82, 83
        for ee, t in ((0, t0), (1, t1)):
            x = vX + 8*ee
            e(f"v_add_f32 v{t}, v{x}, v{x+1}")
            for k in range(2, 8): e(f"v_add_f32 v{t}, v{t}, v{x+k}")
        g.wave_sum([t0, t1], [u0, u1])
        e(f"v_mul_f32 v{t0}, {f32(1.0/448)}, v{t0}\nv_mul_f32 v{t1}, {f32(1.0/448)}, v{t1}")
        for ee, t in ((0, t0), (1, t1)):
            for k in range(8): e(f"v_sub_f32 v{d+8*ee+k}, v{vX+8*ee+k}, v{t}")
        for ee, t in ((0, t0), (1, t1)):
            e(f"v_mul_f32 v{t}, v{d+8*ee}, v{d+8*ee}")
            for k in range(1, 8): e(f"v_fmac_f32 v{t}, v{d+8*ee+k}, v{d+8*ee+k}")
        e(f"v_cndmask_b32 v{t0}, 0, v{t0}, s[{sM56}:{sM56+1}]\nv_cndmask_b32 v{t1}, 0, v{t1}, s[{sM56}:{sM56+1}]")
        g.wave_sum([t0, t1], [u0, u1])
        e(f"""v_mov_b32 v{u0}, {f32(1e-5)}
              v_mov_b32 v{u1}, {f32(1e-5)}
              v_fmac_f32 v{u0}, {f32(1.0/448)}, v{t0}
              v_fmac_f32 v{u1}, {f32(1.0/448)}, v{t1}
              v_rsq_f32 v{u0}, v{u0}
              v_rsq_f32 v{u1}, v{u1}
              s_nop 0""")
        for ee, u in ((0, u0), (1, u1)):
            for k in range(8): e(f"v_mul_f32 v{d+8*ee+k}, v{d+8*ee+k}, v{u}")
        pk = 84
        for ee in range(2):
            for k in range(4): e(f"v_cvt_pk_bf16_f32 v{pk+4*ee+k}, v{d+8*ee+2*k}, v{d+8*ee+2*k+1}")
        e(f"""s_lshl_b32 s{sT}, s{sWV}, 11
              s_add_u32 s{sT}, s{sT}, {L_XN}
              v_lshlrev_b32 v{vT}, 4, v{vLANE}
              v_add_u32 v{vT}, s{sT}, v{vT}
              ds_write_b128 v{vT}, {vr(pk,4)}
              ds_write_b128 v{vT}, {vr(pk+4,4)} offset:1024""")
        if l == 0:
            g.wait_tok('wqa')
            g.lg(0)
            e("s_barrier")
            read_w('WQ', 0, WQF, 124, 125)
        else:
            g.pair_sync()
        e(f"""v_and_b32 v{vT}, 3, v{vLANE}
              v_lshlrev_b32 v{vT}, 10, v{vT}
              v_lshrrev_b32 v{vT+1}, 4, v{vLANE}
              v_lshl_add_u32 v{vT}, v{vT+1}, 4, v{vT}
              s_lshl_b32 s{sT}, s{sG}, 12
              s_mul_i32 s{sT2}, s{sWQ}, 448
              s_add_u32 s{sT}, s{sT}, s{sT2}
              s_add_u32 s{sT}, s{sT}, {L_XN}
              v_add_u32 v{vT}, s{sT}, v{vT}""")
        XB, D = 32, 92
        for st in range(7): e(f"ds_read_b128 {vr(XB+4*st,4)}, v{vT} offset:{st*64}")
        for st in range(7):
            g.lg(6-st)
            cc = "0" if st == 0 else vr(D, 4)
            e(f"v_mfma_f32_16x16x32_bf16 {vr(D,4)}, {vr(WQF+4*st,4)}, {vr(XB+4*st,4)}, {cc}")
        e(f"""v_and_b32 v{vT}, 3, v{vLANE}
              v_lshlrev_b32 v{vT}, 6, v{vT}
              v_lshrrev_b32 v{vT+1}, 4, v{vLANE}
              v_lshl_add_u32 v{vT}, v{vT+1}, 4, v{vT}
              s_lshl_b32 s{sT}, s{sWV}, 8
              s_add_u32 s{sT}, s{sT}, {L_RBUF2}
              v_add_u32 v{vT}, s{sT}, v{vT}""")
        g.nop(8)
        e(f"ds_write_b128 v{vT}, {vr(D,4)}")
        g.pair_sync()
        qbase(l, sT2, sQWR)
        def voff(dst, tmp):
            if c['XPL']:
                e(f"v_lshlrev_b32 v{dst}, 4, v{vLANE}"); return
            e(f"v_lshrrev_b32 v{dst}, 1, v{vLANE}\nv_lshlrev_b32 v{dst}, 10, v{dst}\nv_and_b32 v{tmp}, 1, v{vLANE}\nv_lshl_add_u32 v{dst}, v{tmp}, 4, v{dst}")
        reduce_store(L_RBUF2, voff, sT2, ('qst', l), pol=c['LPOL'] if l > 0 else "sc1")

    def load_q(l):
        g.cmt(f"load q for layer {l}")
        qbase(l, sT2, sQRD)
        if c['XPL']:
            e(f"v_lshrrev_b32 v{vT}, 1, v{vLANE}\nv_lshlrev_b32 v{vT}, 7, v{vT}\nv_and_b32 v{vT+1}, 1, v{vLANE}\nv_lshl_add_u32 v{vT}, v{vT+1}, 4, v{vT}")
        else:
            e(f"v_lshlrev_b32 v{vT}, 4, v{vLANE}")
        R = vST
        def issue(): g.vmem(f"buffer_load_dwordx4 {vr(R,4)}, v{vT}, s[{S_WS}:{S_WS+3}], s{sT2} offen sc1", 'poll')
        if l == 0:
            issue(); g.wait_tok('poll')
        else:
            g.mpoll([(list(range(R, R+4)), issue)], f"q{l}")
        e(f"s_lshl_b32 s{sT}, s{sG}, 10\ns_add_u32 s{sT}, s{sT}, {L_QBUF}\nv_lshlrev_b32 v{vT}, 4, v{vLANE}\nv_add_u32 v{vT}, s{sT}, v{vT}\nds_write_b128 v{vT}, {vr(R,4)}")
        e(f"""v_and_b32 v{vT+1}, 1, v{vLANE}
              v_lshlrev_b32 v{vT+1}, 9, v{vT+1}
              v_bfe_u32 v{vT}, v{vLANE}, 4, 1
              v_lshl_add_u32 v{vT+1}, v{vT}, 4, v{vT+1}
              v_lshrrev_b32 v{vT}, 5, v{vLANE}
              v_lshl_add_u32 v{vT+1}, v{vT}, 8, v{vT+1}
              v_add_u32 v{vT+1}, s{sT}, v{vT+1}""")
        g.lg(0)
        for j in range(8): e(f"ds_read_b128 {vr(vQ+4*j,4)}, v{vT+1} offset:{j*32}")
        g.lg(0)

    moved = set()
    def early_moves(l, n):
        for t in range(16):
            if n <= 0: break
            hm, ld = plan[l][t]
            it = ('K', l, t)
            if hm is not None and ld and it not in moved and it in g.slot:
                g.k_move(it, hm); moved.add(it); n -= 1

    XG = list(range(32, 64)) + list(range(128, 160))
    def xp_gather(l, after=None):
        g.cmt("XP gather")
        if c['XPL']:
            e(f"""s_lshl_b32 s{sT}, s{sWQ}, 6
                  v_lshrrev_b32 v{vT}, 1, v{vLANE}
                  v_lshlrev_b32 v{vT}, 7, v{vT}
                  v_and_b32 v{vT+1}, 1, v{vLANE}
                  v_lshl_add_u32 v{vT}, v{vT+1}, 4, v{vT}""")
        else:
            e(f"""s_mul_i32 s{sT}, s{sWQ}, 1792
                  v_lshlrev_b32 v{vT}, 4, v{vLANE}""")
        e(f"""v_add_u32 v{vT}, s{sT}, v{vT}
              v_mov_b32 v{vT+1}, {OOB}
              v_cndmask_b32 v{vT}, v{vT+1}, v{vT}, s[{sM56}:{sM56+1}]
              s_add_u32 s{sT2}, s{sGB}, {W_XP + l*3584}""")
        EOFF = 32 if c['XPL'] else 896
        if c['XS2']:
            assert c['XPL']
            e(f"s_add_u32 s{sT2}, s{sXSB}, {l*4096}")
            a = XG[0]
            def issue():
                g.vmem(f"buffer_load_dwordx4 {vr(a,4)}, v{vT}, s[{S_WS}:{S_WS+3}], s{sT2} offen sc1", 'poll')
                g.vmem(f"buffer_load_dwordx4 {vr(a+4,4)}, v{vT}, s[{S_WS}:{S_WS+3}], s{sT2} offen offset:{EOFF} sc1", 'poll')
            g.mpoll([(XG[0:8], issue)], f"s2_{l}", after)
            g.ts(f"S2_{l} got")
            for ee in range(2):
                for k in range(4):
                    r = a + 4*ee + k
                    e(f"v_dot2c_f32_bf16 v{vX+8*ee+2*k}, s{sLO}, v{r}\nv_dot2c_f32_bf16 v{vX+8*ee+2*k+1}, s{sHI}, v{r}")
            return
        def part(hk):
            a = XG[8*hk]
            def issue():
                so = sT2
                if hk:
                    e(f"s_add_u32 s{sT3}, s{sT2}, {hk*HSZ}"); so = sT3
                g.vmem(f"buffer_load_dwordx4 {vr(a,4)}, v{vT}, s[{S_WS}:{S_WS+3}], s{so} offen sc1", 'poll')
                g.vmem(f"buffer_load_dwordx4 {vr(a+4,4)}, v{vT}, s[{S_WS}:{S_WS+3}], s{so} offen offset:{EOFF} sc1", 'poll')
            return (XG[8*hk:8*hk+8], issue)
        g.mpoll([part(hk) for hk in range(8)], f"s2_{l}", after)
        g.ts(f"S2_{l} got")
        for hk in range(8):
            for ee in range(2):
                for k in range(4):
                    a = XG[8*hk] + 4*ee + k
                    e(f"v_dot2c_f32_bf16 v{vX+8*ee+2*k}, s{sLO}, v{a}\nv_dot2c_f32_bf16 v{vX+8*ee+2*k+1}, s{sHI}, v{a}")

    def xs_reduce(l):
        g.cmt("XS reduce")
        skip = g.lab("xs")
        e(f"s_cmp_lg_u32 s{sWQ}, 0\ns_cbranch_scc1 {skip}\ns_cmp_ge_u32 s{sI}, 28\ns_cbranch_scc1 {skip}")
        if l == 3: e(f"s_and_b32 s{sT}, s{sI}, 7\ns_cmp_lg_u32 s{sT}, s{sHKV}\ns_cbranch_scc1 {skip}")
        saved = list(g.vm)
        P, F, T = 32, 40, 48
        e(f"""v_lshrrev_b32 v{vT}, 3, v{vLANE}
              v_mul_u32_u24 v{vT}, {HSZ}, v{vT}
              v_and_b32 v{vT+1}, 7, v{vLANE}
              v_lshl_add_u32 v{vT}, v{vT+1}, 4, v{vT}
              s_lshl_b32 s{sT2}, s{sI}, 7
              s_add_u32 s{sT2}, s{sT2}, s{sGB}
              s_add_u32 s{sT2}, s{sT2}, {W_XP + l*3584}""")
        def issue(): g.vmem(f"buffer_load_dwordx4 {vr(P,4)}, v{vT}, s[{S_WS}:{S_WS+3}], s{sT2} offen sc1", 'poll')
        def pre():
            if l < 3: return
            e(f"""s_lshl_b32 s{sT}, s{sG}, 8
                  s_add_u32 s{sT}, s{sT}, {L_XB}
                  v_and_b32 v{T}, 7, v{vLANE}
                  v_lshlrev_b32 v{T}, 5, v{T}
                  v_add_u32 v{T}, s{sT}, v{T}
                  ds_read_b128 {vr(56,4)}, v{T}
                  ds_read_b128 {vr(60,4)}, v{T} offset:16""")
        g.mpoll([(list(range(P, P+4)), issue)], f"xs_{l}", pre)
        g.ts(f"XS_{l} got")
        for k in range(4): e(f"v_lshlrev_b32 v{F+2*k}, 16, v{P+k}\nv_and_b32 v{F+2*k+1}, 0xffff0000, v{P+k}")
        fs = list(range(F, F+8))
        g.dpp_reduce(fs, "v_add_f32", ["row_ror:8"])
        g.nop(1)
        g.xrow_reduce(fs, list(range(T, T+8)), "v_add_f32")
        if l == 3:
            g.lg(0)
            for k in range(8): e(f"v_add_f32 v{F+k}, v{F+k}, v{56+k}")
        for k in range(4): e(f"v_cvt_pk_bf16_f32 v{P+k}, v{F+2*k}, v{F+2*k+1}")
        if l < 3:
            for k in range(4): e(f"v_min_u32 v{P+k}, -2, v{P+k}")
            e(f"""v_lshlrev_b32 v{vT}, 4, v{vLANE}
                  s_lshl_b32 s{sT2}, s{sI}, 7
                  s_add_u32 s{sT2}, s{sT2}, s{sXSB}
                  s_add_u32 s{sT2}, s{sT2}, {l*4096}""")
        else:
            e(f"""v_lshrrev_b32 v{vT}, 1, v{vLANE}
                  v_mul_u32_u24 v{vT}, 896, v{vT}
                  v_and_b32 v{vT+1}, 1, v{vLANE}
                  v_lshl_add_u32 v{vT}, v{vT+1}, 4, v{vT}
                  s_mul_i32 s{sT2}, s{sG}, 3584
                  s_lshl_b32 s{sT}, s{sI}, 5
                  s_add_u32 s{sT2}, s{sT2}, s{sT}""")
        e(f"""v_cmp_gt_u32 vcc, 8, v{vLANE}
              v_mov_b32 v{vT+1}, {OOB}
              s_nop 0
              v_cndmask_b32 v{vT}, v{vT+1}, v{vT}, vcc""")
        if l < 3: g.lstore([f"buffer_store_dwordx4 {vr(P,4)}, v{vT}, s[{S_WS}:{S_WS+3}], s{sT2} offen"], ['xsst'], c['LPOL'])
        else:     g.vmem(f"buffer_store_dwordx4 {vr(P,4)}, v{vT}, s[{S_OUT}:{S_OUT+3}], s{sT2} offen", 'out')
        g.ts(f"XS_{l} stored")
        e(f"s_nop 1\n{skip}:")
        g.vm = saved
    def xb_write():
        e(f"""v_lshrrev_b32 v{vT}, 1, v{vLANE}
              v_cmp_eq_u32 vcc, s{sI}, v{vT}
              s_lshl_b32 s{sT}, s{sG}, 8
              s_lshl_b32 s3, s{sWQ}, 7
              s_add_u32 s{sT}, s{sT}, s3
              s_add_u32 s{sT}, s{sT}, {L_XB}
              v_and_b32 v{vT}, 1, v{vLANE}
              v_lshlrev_b32 v{vT}, 5, v{vT}
              v_add_u32 v{vT}, s{sT}, v{vT}
              s_and_b32 vcc_hi, vcc_hi, 0x00ffffff
              s_mov_b64 exec, vcc""")
        for ee in range(2):
            e(f"ds_write_b128 v{vT}, {vr(vX+8*ee,4)} offset:{ee*64}\nds_write_b128 v{vT}, {vr(vX+8*ee+4,4)} offset:{ee*64+16}")
        e("s_mov_b64 exec, -1")

    def stag_write():
        e(f"s_lshl_b32 s{sT}, s{sG}, 2\ns_add_u32 s{sT}, s{sT}, {L_STG}\nv_mov_b32 v{vT}, s{sT}\nv_mov_b32 v{vT+1}, 1\nds_write_b32 v{vT}, v{vT+1}")

    s2_compute(0)
    g.ts("q0 stored")
    nmv = min(c['MV0'], c['MV0A'])
    early_moves(0, nmv)
    g.wait_tok(('qst', 0))
    e("s_barrier")
    e(f"""s_cmp_eq_u32 s{sWV}, 0
          s_cselect_b32 s{sT}, 1, 0
          v_cmp_gt_u32 vcc, s{sT}, v{vLANE}
          v_mov_b32 v{vT}, {OOB}
          v_mov_b32 v{vT+1}, s2
          v_cndmask_b32 v{vT}, v{vT}, v{vT+1}, vcc
          v_mov_b32 v{vT+1}, s{sXCC}""")
    g.vmem(f"buffer_store_byte v{vT+1}, v{vT}, s[{S_DBG}:{S_DBG+3}], 0 offen sc1", 'flag')
    early_moves(0, c['MV0'] - nmv)
    if c['MVB'] and c['MVBP'] == 0: early_moves(1, c['MVB'])
    g.ts("moves0")
    e(f"v_lshlrev_b32 v{vT}, 2, v{vLANE}")
    FR = vST
    def issue_f(): g.vmem(f"buffer_load_dword v{FR}, v{vT}, s[{S_DBG}:{S_DBG+3}], 0 offen sc1", 'poll')
    def check_f(): e(f"v_and_b32 v{FR+1}, 0x01010101, v{FR}\nv_cmp_ne_u32 vcc, 0x01010101, v{FR+1}")
    g.poll(issue_f, check_f, "init")
    e(f"""s_and_b32 s{sT}, s{sHKV}, 3
          s_lshl_b32 s{sT}, s{sT}, 3
          v_lshrrev_b32 v{FR+1}, s{sT}, v{FR}
          v_and_b32 v{FR+1}, 0xff, v{FR+1}
          s_lshr_b32 s{sT}, s{sHKV}, 2
          v_cmp_ne_u32 vcc, s{sXCC}, v{FR+1}
          s_mov_b32 s{sT2}, 0x55555555
          s_lshl_b32 s{sT2}, s{sT2}, s{sT}
          s_and_b32 s{sT}, vcc_lo, s{sT2}
          s_and_b32 s{sT2}, vcc_hi, s{sT2}
          s_or_b32 s{sT}, s{sT}, s{sT2}
          s_cmp_eq_u32 s{sT}, 0
          s_cselect_b32 s{sLOC}, 1, 0""")
    g.ts("init done")
    if c['MVB'] and c['MVBP'] == 1: early_moves(1, c['MVB'])
    lskip = g.lab("wskip")
    e(f"s_cmp_eq_u32 s{sG}, 0\ns_cbranch_scc1 {lskip}")
    saved = list(g.vm)
    w_voff('WO', vT, vT+1)
    w_load('WO', 0, vT, 'w'); w_load('WO', 1, vT, 'w')
    w_voff('WQ', vT, vT+1)
    w_load('WQ', 1, vT, 'w')
    e("s_waitcnt vmcnt(0)")
    e(f"s_lshl_b32 s{sT}, s{sWQ}, 2\ns_add_u32 s{sT}, s{sT}, {L_WFL}\nv_mov_b32 v{vT}, s{sT}\nv_mov_b32 v{vT+1}, 1\nds_write_b32 v{vT}, v{vT+1}")
    if c['SOLO']: e("s_branch Lfin")
    e(f"{lskip}:")
    g.vm = saved
    if c['STAG'] >= 0:
        lp, ld = g.lab("stg"), g.lab("stgd")
        e(f"""v_mov_b32 v{vT}, {L_STG}
              {lp}:
              ds_read_b32 v{vT+1}, v{vT}
              s_waitcnt lgkmcnt(0)
              v_cmp_gt_u32 vcc, s{sG}, v{vT+1}
              s_cbranch_vccz {ld}
              s_cmp_eq_u32 s{sSPINL}, 0
              s_cbranch_scc1 {ld}
              s_sub_u32 s{sSPINL}, s{sSPINL}, 1
              s_sleep 2
              s_branch {lp}
              {ld}:""")

    KP = c['KP']
    for l in range(4):
        load_q(l)
        g.ts(f"q{l} ready")
        g.klimit = None
        g.pump()
        if l < 3: g.klimit = [l+1, KP[0]]
        order = [t for t in range(16) if plan[l][t][0] is not None and (not plan[l][t][1] or ('K', l, t) in moved)]
        order += [t for t in range(16) if t not in order]
        for n, t in enumerate(order):
            hm, ld = plan[l][t]
            it = ('K', l, t)
            if hm is not None and (not ld or it in moved):
                g.cmt(f"resident K tile {t}")
                g.k_mfma(t, hm.r, False)
            else:
                g.k_ring(it, t, hm)
            if l == 0 and c['STAG'] == n: stag_write()
            if l == c['TSL']: g.ts(f"k{n}", True)
        g.ts(f"K{l} done")
        g.nop(8)
        m, t1, ls, nm = vST, vST+1, vST+2, vST+3
        e(f"v_max3_f32 v{m}, v{vS}, v{vS+1}, v{vS+2}\nv_max3_f32 v{t1}, v{vS+3}, v{vS+4}, v{vS+5}")
        k = 6
        while k < 64:
            tgt = m if ((k - 6)//2) % 2 == 0 else t1
            e(f"v_max3_f32 v{tgt}, v{tgt}, v{vS+k}, v{vS+k+1}"); k += 2
        e(f"v_max_f32 v{m}, v{m}, v{t1}")
        g.xrow_reduce([m], [t1], "v_max_f32")
        e(f"v_mul_f32 v{m}, s{sC}, v{m}\nv_mov_b32 v{ls}, 0\nv_mov_b32 v{nm}, 0")
        for t in range(16):
            b = vS + 4*t
            for r in range(4): e(f"v_fma_f32 v{b+r}, v{b+r}, s{sC}, -v{m}")
            for r in range(4): e(f"v_exp_f32 v{b+r}, v{b+r}")
            e(f"v_cvt_pk_bf16_f32 v{vQ+2*t}, v{b}, v{b+1}\nv_add_f32 v{ls}, v{ls}, v{b}\nv_add_f32 v{nm}, v{nm}, v{b+1}")
            e(f"v_cvt_pk_bf16_f32 v{vQ+2*t+1}, v{b+2}, v{b+3}\nv_add_f32 v{ls}, v{ls}, v{b+2}\nv_add_f32 v{nm}, v{nm}, v{b+3}")
        e(f"v_add_f32 v{ls}, v{ls}, v{nm}")
        g.xrow_reduce([ls], [t1], "v_add_f32")
        e(f"""v_mov_b32 v{t1}, v{ls}
              v_and_b32 v{nm}, 1, v{vLANE}
              v_lshlrev_b32 v{nm}, 3, v{nm}
              s_lshl_b32 s{sT}, s{sWV}, 4
              s_add_u32 s{sT}, s{sT}, {L_MLBUF}
              v_add_u32 v{nm}, s{sT}, v{nm}
              ds_write_b64 v{nm}, v[{m}:{m+1}]
              s_waitcnt lgkmcnt(0)""")
        g.ts(f"sm{l} done")
        for u in range(16):
            g.v_ring(('V', l, u), u)
            if l == 0 and c['STAG'] == 16 + u: stag_write()
            if l == c['TSL']: g.ts(f"v{u}", True)
        g.ts(f"V{l} done")
        e(f"""v_and_b32 v{vT}, 1, v{vLANE}
              v_lshlrev_b32 v{vT}, 10, v{vT}
              v_lshrrev_b32 v{vT+1}, 4, v{vLANE}
              v_lshl_add_u32 v{vT}, v{vT+1}, 4, v{vT}
              s_lshl_b32 s{sT}, s{sWV}, 11
              s_add_u32 s{sT}, s{sT}, {L_OBUF}
              v_add_u32 v{vT}, s{sT}, v{vT}""")
        g.nop(8)
        e(f"s_mov_b64 exec, s[{sMC2}:{sMC2+1}]")
        for tp in range(16):
            e(f"ds_write_b128 v{vT}, {vr(vS+4*tp,4)} offset:{tp*64}")
            if tp == 11: g.lg(4)
        e("s_mov_b64 exec, -1")
        g.pair_sync()
        ML, OO, MM = 32, 40, 36
        e(f"""s_lshl_b32 s{sT}, s{sG}, 5
              s_lshl_b32 s{sT2}, s{sWQ}, 3
              s_add_u32 s{sT}, s{sT}, s{sT2}
              s_add_u32 s{sT}, s{sT}, {L_MLBUF}
              v_mov_b32 v{vT}, s{sT}
              s_lshl_b32 s{sT}, s{sG}, 12
              s_lshl_b32 s{sT2}, s{sWQ}, 10
              s_add_u32 s{sT}, s{sT}, s{sT2}
              s_add_u32 s{sT}, s{sT}, {L_OBUF}
              v_and_b32 v{vT+1}, 31, v{vLANE}
              v_lshlrev_b32 v{vT+1}, 5, v{vT+1}
              v_add_u32 v{vT+1}, s{sT}, v{vT+1}""")
        for w in range(2): e(f"ds_read_b64 {vr(ML+2*w,2)}, v{vT} offset:{w*16}")
        for w in range(2):
            e(f"ds_read_b128 {vr(OO+8*w,4)}, v{vT+1} offset:{w*2048}\nds_read_b128 {vr(OO+8*w+4,4)}, v{vT+1} offset:{w*2048+16}")
        A1, A2, A3 = 56, 57, 58
        if c['OPL'] == 0:
            e(f"""v_lshrrev_b32 v{A1}, 2, v{vLANE}
                  v_lshlrev_b32 v{A1}, 10, v{A1}
                  v_and_b32 v{A3}, 3, v{vLANE}
                  v_lshl_add_u32 v{A1}, v{A3}, 4, v{A1}""")
        else:
            e(f"v_lshlrev_b32 v{A1}, 4, v{vLANE}")
        e(f"""v_cmp_gt_u32 vcc, 32, v{vLANE}
              v_mov_b32 v{A3}, {OOB}
              s_nop 0
              v_cndmask_b32 v{A1}, v{A3}, v{A1}, vcc
              v_cmp_eq_u32 vcc, 0, v{vLANE}
              v_mov_b32 v{A2}, 0
              s_nop 0
              v_cndmask_b32 v{A2}, v{A3}, v{A2}, vcc""")
        g.lg(4)
        e(f"""v_max_f32 v{MM}, v{ML}, v{ML+2}
              v_sub_f32 v{ML}, v{ML}, v{MM}
              v_sub_f32 v{ML+2}, v{ML+2}, v{MM}
              v_exp_f32 v{ML}, v{ML}
              v_exp_f32 v{ML+2}, v{ML+2}
              s_nop 0
              v_mul_f32 v{MM+1}, v{ML}, v{ML+1}
              v_fmac_f32 v{MM+1}, v{ML+2}, v{ML+3}""")
        g.lg(0)
        for k in range(8): e(f"v_mul_f32 v{OO+k}, v{OO+k}, v{ML}")
        for k in range(8): e(f"v_fmac_f32 v{OO+k}, v{OO+8+k}, v{ML+2}")
        for k in range(4): e(f"v_cvt_pk_bf16_f32 v{OO+8+k}, v{OO+2*k}, v{OO+2*k+1}")
        for k in range(4): e(f"v_min_u32 v{OO+8+k}, -2, v{OO+8+k}")
        e(f"s_add_u32 s{sT2}, s{sOPWR}, {l*32768}\ns_add_u32 s{sT3}, s{sMLWR}, {l*MLS}")
        g.lstore([f"buffer_store_dwordx4 {vr(OO+8,4)}, v{A1}, s[{S_WS}:{S_WS+3}], s{sT2} offen",
                  f"buffer_store_dwordx2 {vr(MM,2)}, v{A2}, s[{S_WS}:{S_WS+3}], s{sT3} offen"], ['opst', 'mlst'], c['LPOL'])
        g.ts(f"OP{l} stored")
        g.nop(2)
        VA, VB = 120, 121
        e(f"""v_and_b32 v{VA}, 15, v{vLANE}
              v_lshlrev_b32 v{VB}, {8 if c['MLX'] else 4}, v{VA}
              v_lshlrev_b32 v{VA}, {6 if c['OPL'] == 0 else 9}, v{VA}
              v_lshrrev_b32 v{vT}, 4, v{vLANE}
              v_lshl_add_u32 v{VA}, v{vT}, 4, v{VA}
              s_lshl_b32 s{sT}, s{sWQ}, 14
              s_add_u32 s{sT2}, s{sOPRD}, {l*32768}
              s_add_u32 s{sT2}, s{sT2}, s{sT}
              s_add_u32 s{sT3}, s{sMLRD}, {l*MLS}""")
        M2 = 124
        BG = [32, 128]
        def part_s1(nt):
            def issue():
                if c['MLX'] and nt:
                    e(f"s_add_u32 s{sT4}, s{sT3}, 4096")
                    g.vmem(f"buffer_load_dwordx2 {vr(M2+2*nt,2)}, v{VB}, s[{S_WS}:{S_WS+3}], s{sT4} offen sc1", 'poll')
                else:
                    g.vmem(f"buffer_load_dwordx2 {vr(M2+2*nt,2)}, v{VB}, s[{S_WS}:{S_WS+3}], s{sT3} offen offset:{256*nt} sc1", 'poll')
                for st in range(8):
                    if c['OPL'] == 0:
                        if (nt, st) == (0, 0): so = sT2
                        elif st % 4 == 0:
                            e(f"s_add_u32 s{sT4}, s{sT2}, {nt*8192 + st*1024}"); so = sT4
                        off = (st%4)*1024
                    else:
                        if nt == 0: so = sT2
                        elif st == 0:
                            e(f"s_add_u32 s{sT4}, s{sT2}, 8192"); so = sT4
                        off = st*64
                    g.vmem(f"buffer_load_dwordx4 {vr(BG[nt]+4*st,4)}, v{VA}, s[{S_WS}:{S_WS+3}], s{so} offen offset:{off} sc1", 'poll')
            return ([M2+2*nt, M2+2*nt+1] + list(range(BG[nt], BG[nt]+32)), issue)
        def after_s1():
            if l == 0:
                lds_wait(lambda: e(f"s_lshl_b32 s{sT}, s{sWQ}, 2\ns_add_u32 s{sT}, s{sT}, {L_WFL}\nv_mov_b32 v{vT}, s{sT}"), 1)
            if l < 3: g.allow(KP[1])
            if l == 3 and c['XS2']: xb_write()
            read_w('WO', l & 1, WOF, 122, 123)
        g.mpoll([part_s1(0), part_s1(1)], f"s1_{l}", after_s1)
        g.ts(f"S1_{l} got")
        D = 96
        for st in range(8):
            for nt in range(2):
                cc = "0" if st == 0 else vr(D+4*nt, 4)
                e(f"v_mfma_f32_16x16x32_bf16 {vr(D+4*nt,4)}, {vr(WOF+4*st,4)}, {vr(BG[nt]+4*st,4)}, {cc}")
        a0, a1, b0, b1 = 104, 105, 106, 107
        e(f"v_mov_b32 v{a0}, v{M2}\nv_mov_b32 v{a1}, v{M2+2}")
        g.dpp_reduce([a0, a1], "v_max_f32", P8)
        e(f"""v_sub_f32 v{a0}, v{M2}, v{a0}
              v_sub_f32 v{a1}, v{M2+2}, v{a1}
              v_exp_f32 v{a0}, v{a0}
              v_exp_f32 v{a1}, v{a1}
              s_nop 0
              v_mul_f32 v{b0}, v{a0}, v{M2+1}
              v_mul_f32 v{b1}, v{a1}, v{M2+3}""")
        g.dpp_reduce([b0, b1], "v_add_f32", P8)
        e(f"""v_rcp_f32 v{b0}, v{b0}
              v_rcp_f32 v{b1}, v{b1}
              s_nop 0
              v_mul_f32 v{a0}, v{a0}, v{b0}
              v_mul_f32 v{a1}, v{a1}, v{b1}""")
        e(f"""v_bfe_u32 v{vT}, v{vLANE}, 3, 1
              v_lshlrev_b32 v{vT}, 6, v{vT}
              v_lshrrev_b32 v{vT+1}, 4, v{vLANE}
              v_lshl_add_u32 v{vT}, v{vT+1}, 4, v{vT}
              s_lshl_b32 s{sT}, s{sWV}, 8
              s_add_u32 s{sT}, s{sT}, {L_RBUF}
              v_add_u32 v{vT}, s{sT}, v{vT}""")
        g.nop(4)
        for k in range(4): e(f"v_mul_f32 v{D+k}, v{D+k}, v{a0}\nv_mul_f32 v{D+4+k}, v{D+4+k}, v{a1}")
        g.dpp_reduce([D+k for k in range(8)], "v_add_f32", P8)
        e(f"ds_write_b128 v{vT}, {vr(D,4)}\nds_write_b128 v{vT}, {vr(D+4,4)} offset:128")
        g.pair_sync()
        e(f"s_add_u32 s{sT2}, s{sXPWR}, {l*3584}")
        def voff_xp(dst, tmp):
            if c['XPL']:
                e(f"v_lshlrev_b32 v{dst}, 4, v{vLANE}"); return
            e(f"v_lshrrev_b32 v{dst}, 1, v{vLANE}\nv_mul_u32_u24 v{dst}, 896, v{dst}\nv_and_b32 v{tmp}, 1, v{vLANE}\nv_lshl_add_u32 v{dst}, v{tmp}, 4, v{dst}")
        def cond_xp():
            e(f"s_cmp_lt_u32 s{sI}, 28\ns_cselect_b32 s{sT}, s{sT}, 0")
        reduce_store(L_RBUF, voff_xp, sT2, 'xpst', cond_xp, pol=c['XPOL'])
        g.ts(f"XP{l} stored")
        if c['XS2']: xs_reduce(l)
        if l == 3 and c['XS2']:
            pass
        elif l == 3:
            e(f"s_cmp_lg_u32 s2, 0\ns_cbranch_scc1 Lfin")
            xp_gather(l)
            for k in range(8): e(f"v_cvt_pk_bf16_f32 v{32+k}, v{vX+2*k}, v{vX+2*k+1}")
            xoff(sT)
            e(f"v_lshlrev_b32 v{vT}, 4, v{vLANE}\nv_mov_b32 v{vT+1}, {OOB}\nv_cndmask_b32 v{vT}, v{vT+1}, v{vT}, s[{sM56}:{sM56+1}]")
            g.vmem(f"buffer_store_dwordx4 v[32:35], v{vT}, s[{S_OUT}:{S_OUT+3}], s{sT} offen")
            g.vmem(f"buffer_store_dwordx4 v[36:39], v{vT}, s[{S_OUT}:{S_OUT+3}], s{sT} offen offset:896")
            g.ts("out stored")
        else:
            g.nop(2)
            xp_gather(l, lambda: (g.allow(KP[2]), read_w('WQ', (l+1) & 1, WQF, 124, 125)))
            s2_compute(l+1)
            g.ts(f"Q{l+1} stored")
            g.nop(2)
            g.allow(KP[3])
            early_moves(l+1, c['PRE_Q'][l])
    e("Lfin:")
    assert not g.q and len(g.free) == c['DEPTH'], (g.q, g.free)
    if c['TS']:
        g.ts("end")
        e(f"""s_lshl_b32 s{sT}, s2, 2
              s_add_u32 s{sT}, s{sT}, s{sWV}
              s_lshl_b32 s{sT}, s{sT}, 8
              s_add_u32 s{sT}, s{sT}, {W_TS_ABS}
              v_lshlrev_b32 v{vT}, 2, v{vLANE}
              buffer_store_dword v{vTS}, v{vT}, s[{S_WS}:{S_WS+3}], s{sT} offen""")
    e("Lend:")
    body = "\n".join(g.L)
    hdr = f"""; {NAME}
; @launch grid=(256,1,1) block=(256,1,1) lds={L_END}
.amdgcn_target "amdgcn-amd-amdhsa--gfx950"
.text
.globl {NAME}_kernel
.p2align 8
.type {NAME}_kernel,@function
{NAME}_kernel:
"""
    ftr = f"""
s_endpgm
.section .rodata,"a"
.p2align 6
.amdhsa_kernel {NAME}_kernel
  .amdhsa_next_free_vgpr 512
  .amdhsa_next_free_sgpr 102
  .amdhsa_accum_offset 256
  .amdhsa_group_segment_fixed_size 0
  .amdhsa_kernarg_size 104
  .amdhsa_user_sgpr_count 2
  .amdhsa_user_sgpr_kernarg_segment_ptr 1
  .amdhsa_system_sgpr_workgroup_id_x 1
.end_amdhsa_kernel
"""
    return hdr + body + ftr, g.tsnames

if __name__ == "__main__":
    import json
    out = sys.argv[1]
    cfg = json.loads(sys.argv[2]) if len(sys.argv) > 2 else {}
    s, names = build(cfg)
    open(out, "w").write(s)
    if names: json.dump(names, open(out + ".ts.json", "w"))
    print(out, len(s), "bytes", len(s.splitlines()), "lines")
```

```python
import sys, math, struct

NAME = "interleave_layers__gqa_block_cached__gqa_block_cached__decode"

DEFAULT = dict(
    CSTR=8192, TSTR=131072,
    ROT=0,
    NH=(6, 5),
    XH3=0,
    STAG=24,
    KVPOL="nt", WPOL="",
    MV0=6, MV0A=3,
    KP=(0, 2, 0, 0),
    PRE_Q=(0, 0, 0),
    TS=False,
    SPIN=200000, SPINL=4000000,
    SLEEP=1,
    DEPTH=2,
    MPOLL=1, TSP=0, SOLO=0,
    MLX=1,
    XPL=1,
    OPL=1,
    LPOL="auto",
    XPOL="sc1",
    XS2=1,
    MVS=(3, 3, 0, 0),
    STAGQ=1,
    FLG="byte", POLLW=0, ISLEEP=1,
    MUTEX=-1,
    DEEP=(None, None, None, None),
    CAP=0,
    HSLEEP=4, HGLC="glc",
    SW=(0, 0, 0),
    HINT=(0, 0, 0, 0),
    MVBP=1,
    MVB=0,
    REMAP=0,
    TSL=-1,
)

S_KA, S_VA, S_KB, S_VB = 4, 8, 12, 16
S_WQA, S_WOA, S_WQB, S_WOB = 20, 24, 28, 32
S_WS, S_DBG, S_X, S_OUT = 36, 40, 44, 48
sWV, sHKV, sG, sI = 52, 53, 54, 55
sRING, sTOFF, sWOOFF, sWQOFF = 56, 57, 58, 59
sGB, sOPRD, sMLRD, sXPWR = 60, 61, 62, 63
sQRD, sSPIN, sC, sT = 64, 65, 68, 69
sM56 = 66
sMC2 = 70
sT2, sT3, sROT, sQWR = 72, 73, 74, 75
sOPWR, sMLWR, sBB, sT4 = 76, 77, 78, 79
sTS = 80
sWQ, sSPINL, sFLO, sFLP = 82, 83, 84, 85
sANY = 90
sCNT = 91
sXSB, sLOC = 101, 100
sHT = 88
sH = 92
sXCC = 92
sLO, sHI, sNQ, sPB = 86, 87, 88, 89
vTS = 0
vLANE = 1
vDVO = 2
vAL = 6
vX = 14
vT = 30
vQ = 32
vS = 64
vST = 128
def set_lds_map(depth):
    global L_WO, L_WQ, L_OBUF, L_MLBUF, L_FLAG, L_STG, L_WFL, L_TK, L_RBUF, L_RBUF2, L_XN, L_QBUF, L_XB, L_END
    L_WO = 4*depth*8192
    L_WQ = L_WO + 32768
    p = L_WQ + 28672
    if depth < 3:
        L_OBUF = p; p += 4*2048
    L_MLBUF = p
    L_FLAG = L_MLBUF + 64
    L_STG = L_FLAG + 16
    L_WFL = L_STG + 8
    L_TK = L_FLAG + 32
    L_RBUF = L_MLBUF + 256
    p = L_RBUF + 1024
    if depth < 3:
        L_RBUF2 = p; p += 1024
        L_XN = p; p += 8192
    else:
        L_RBUF2 = L_RBUF
    L_QBUF = p
    L_XB = L_QBUF + 2048
    L_END = L_XB + 512
    assert L_END <= 163840
set_lds_map(2)
GSZ = 0x180000
HSZ = 0x30000
W_ML = 0x20000
W_XP = 0x21000
W_Q = 0x25000
W_Q0 = 0x300000
W_XS = 0x310000
W_HT = 0x390000
W_TS_ABS = 0x340000
WS_SIZE = 0x400000
OOB = 0x80000000

def vr(a, n=1):
    return f"v{a}" if n == 1 else f"v[{a}:{a+n-1}]"
def f32(x):
    return "0x%08x" % struct.unpack("<I", struct.pack("<f", x))[0]

class Home:
    def __init__(self, kind, base): self.kind, self.base = kind, base
    def r(self, j): return f"{self.kind}[{self.base+4*j}:{self.base+4*j+3}]"
HOMES = [Home('a', 32*k) for k in range(8)] + [Home('v', 160+32*k) for k in range(3)]

class G:
    def __init__(self, cfg):
        self.c = cfg
        self.L = []
        self.vm = []
        self.free = list(range(cfg['DEPTH']))
        self.q = []
        self.slot = {}
        self.mode = None
        self.nlab = 0
        self.nts = 0
        self.tsnames = []
        self.nsync = 0
        self.resv = None; self.resv_all = False
        self.deep = None
        self.klimit = None
    def e(self, s):
        for ln in s.split("\n"):
            ln = ln.strip()
            if ln: self.L.append("    " + ln if not ln.endswith(":") else ln)
    def cmt(self, s): self.L.append("    ; " + s)
    def lab(self, p):
        self.nlab += 1
        return f"L{p}_{self.nlab}"
    def nop(self, n):
        while n > 0:
            k = min(n, 8); self.e(f"s_nop {k-1}"); n -= k
    def vmem(self, s, tok=None):
        self.e(s); self.vm.append(tok)
    def lstore(self, ss, toks, pol):
        if pol != "auto":
            for s_, t in zip(ss, toks): self.vmem(f"{s_} {pol}", t)
            return
        ls, ld = self.lab("wt"), self.lab("wd")
        self.e(f"s_cmp_eq_u32 s{sLOC}, 0\ns_cbranch_scc1 {ls}")
        for s_ in ss: self.e(s_)
        self.e(f"s_branch {ld}\n{ls}:")
        for s_, t in zip(ss, toks): self.vmem(f"{s_} sc1", t)
        self.e(f"{ld}:")
    def wait_tok(self, tok):
        idx = None
        for k in range(len(self.vm)-1, -1, -1):
            if self.vm[k] == tok: idx = k; break
        if idx is None: return
        n = len(self.vm) - 1 - idx
        self.e(f"s_waitcnt vmcnt({min(n,63)})")
        self.vm = self.vm[idx+1:]
    def wait_all(self):
        self.e("s_waitcnt vmcnt(0)"); self.vm = []
    def lg(self, n=0): self.e(f"s_waitcnt lgkmcnt({n})")
    def tskeep(self, name):
        L = self.c['TSP'] - 1
        return name in ("start", "end") or name.startswith("V") or f"_{L}" in name or name.startswith((f"q{L+1}", f"OP{L}", f"XP{L}", f"Q{L+1}", f"q{L} ready"))
    def ts(self, name, fine=False):
        if not self.c['TS']: return
        L = self.c['TSL']
        if L >= 0:
            pre = []
            for M in (L-1, L):
                pre += [f"V{M} ", f"OP{M} ", f"S1_{M}", f"S2_{M}", f"XS_{M}", f"Q{M+1}", f"XP{M}", f"q{M+1} "]
            keep = (fine and name[0] in "kv") or name in ("start", "end") or name.startswith(tuple(pre)) or name.startswith(f"q{L} ")
            if not keep: return
        elif self.c['TSP']:
            if not self.tskeep(name): return
        elif fine: return
        assert self.nts < 64
        self.e(f"s_waitcnt lgkmcnt(0)\ns_memrealtime s[{sTS}:{sTS+1}]\ns_waitcnt lgkmcnt(0)\nv_writelane_b32 v{vTS}, s{sTS}, {self.nts}")
        self.tsnames.append(name); self.nts += 1
    def pair_sync(self):
        self.nsync += 1
        k = self.nsync
        lp, ld = self.lab("ps"), self.lab("pd")
        self.e(f"""s_waitcnt lgkmcnt(0)
                   v_mov_b32 v{vT}, s{sFLO}
                   v_mov_b32 v{vT+1}, {k}
                   ds_write_b32 v{vT}, v{vT+1}
                   v_mov_b32 v{vT}, s{sFLP}
                   {lp}:
                   ds_read_b32 v{vT+1}, v{vT}
                   s_waitcnt lgkmcnt(0)
                   v_cmp_gt_u32 vcc, {k}, v{vT+1}
                   s_cbranch_vccz {ld}
                   s_cmp_eq_u32 s{sSPINL}, 0
                   s_cbranch_scc1 {ld}
                   s_sub_u32 s{sSPINL}, s{sSPINL}, 1
                   s_branch {lp}
                   {ld}:""")
    def pump(self, n=99, block=True):
        while self.free and self.q and n > 0:
            it = self.q[0]
            nxt = it[0] == 'K' and self.klimit is not None and it[1] == self.klimit[0]
            cand = [s_ for s_ in self.free if not (s_ == self.resv and (nxt or self.resv_all))]
            if not cand: break
            if nxt:
                if self.klimit[1] <= 0: break
                self.klimit[1] -= 1
            if self.c['CAP']:
                fl = []
                for t_ in self.vm:
                    if isinstance(t_, tuple) and t_[0] in ('K', 'V') and t_ not in fl: fl.append(t_)
                if len(fl) >= self.c['CAP']:
                    if not block: break
                    tk = fl[len(fl) - self.c['CAP']]
                    if self.deep is None: self.wait_tok(tk)
                    else:
                        idx = max(k for k in range(len(self.vm)) if self.vm[k] == tk)
                        lb = self.lab("dp")
                        self.e(f"s_cmp_eq_u32 s{sG}, {self.deep}\ns_cbranch_scc1 {lb}\ns_waitcnt vmcnt({min(len(self.vm)-1-idx, 63)})\n{lb}:")
            self.q.pop(0); sl = cand[0]; self.free.remove(sl)
            self.slot[it] = sl
            self.issue(it, sl); n -= 1
    def reserve(self, sl):
        self.resv = sl
        self.resv_all = True
    def unreserve(self):
        self.resv = None
        self.pump()
    def allow(self, n):
        if self.klimit is not None: self.klimit[1] += n
        self.pump()
    def release(self, it, pump=True):
        self.free.append(self.slot.pop(it))
        if pump: self.pump()
    def issue(self, it, sl):
        kind, l = it[0], it[1]
        c = self.c
        if kind in ('K', 'V'):
            t = it[2]
            srd = {('K',0):S_KA, ('V',0):S_VA, ('K',1):S_KB, ('V',1):S_VB}[(kind, l & 1)]
            self.e(f"s_add_u32 m0, s{sRING}, {sl*8192}")
            if c['ROT']:
                self.e(f"s_add_u32 s{sT}, s{sROT}, {t*c['TSTR']}\ns_and_b32 s{sT}, s{sT}, {16*c['TSTR']-1}\ns_add_u32 s{sT}, s{sT}, s{sTOFF}")
            else:
                self.e(f"s_add_u32 s{sT}, s{sTOFF}, {t*c['TSTR']}")
            for half in range(2):
                if half:
                    self.e(f"s_add_u32 m0, s{sRING}, {sl*8192+4096}\ns_add_u32 s{sT}, s{sT}, 4096")
                for k in range(4):
                    self.vmem(f"buffer_load_dwordx4 v{vDVO+k}, s[{srd}:{srd+3}], s{sT} offen offset:{k*1024} {c['KVPOL']} lds", it)
        else:
            raise AssertionError(it)
    def setmode(self, m):
        if self.mode == m: return
        self.mode = m
        a, t, u = vAL, vAL+1, vAL+2
        if m == 'K':
            self.e(f"""v_and_b32 v{t}, 15, v{vLANE}
                       v_lshlrev_b32 v{a}, 9, v{t}
                       v_and_b32 v{t}, 7, v{t}
                       v_lshl_add_u32 v{a}, v{t}, 5, v{a}
                       v_lshrrev_b32 v{t}, 5, v{vLANE}
                       v_lshl_add_u32 v{a}, v{t}, 8, v{a}
                       v_bfe_u32 v{t}, v{vLANE}, 4, 1
                       v_lshl_add_u32 v{a}, v{t}, 4, v{a}
                       v_add_u32 v{a}, s{sRING}, v{a}""")
        else:
            self.e(f"""v_lshrrev_b32 v{t}, 2, v{vLANE}
                       v_lshlrev_b32 v{a}, 9, v{t}
                       v_and_b32 v{t}, 7, v{t}
                       v_lshl_add_u32 v{a}, v{t}, 5, v{a}
                       v_and_b32 v{t}, 3, v{vLANE}
                       v_lshl_add_u32 v{a}, v{t}, 3, v{a}
                       v_add_u32 v{a}, s{sRING}, v{a}""")
        for j in range(1, 8): self.e(f"v_xor_b32 v{vAL+j}, {j*32}, v{a}")
    def k_read(self, it, dst):
        self.setmode('K')
        self.wait_tok(it)
        sl = self.slot[it]
        for j in range(8):
            self.e(f"ds_read_b128 {dst(j)}, v{vAL+j} offset:{sl*8192}")
    def k_move(self, it, home):
        self.cmt(f"move {it} -> home {home.kind}{home.base}")
        self.k_read(it, home.r)
        self.lg(0)
        self.release(it)
    def k_mfma(self, t, src, waits):
        for j in range(8):
            if waits: self.lg(7-j)
            cc = "0" if j == 0 else vr(vS+4*t, 4)
            self.e(f"v_mfma_f32_16x16x32_bf16 {vr(vS+4*t,4)}, {src(j)}, {vr(vQ+4*j,4)}, {cc}")
    def k_ring(self, it, t, home=None):
        self.cmt(f"consume {it}")
        src = home.r if home else (lambda j: vr(vST+4*j, 4))
        self.k_read(it, src)
        self.k_mfma(t, src, True)
        self.release(it)
    def v_ring(self, it, u):
        self.cmt(f"consume {it}")
        self.setmode('V')
        self.wait_tok(it)
        sl = self.slot[it]
        def rd(tp):
            self.e(f"ds_read_b64_tr_b16 {vr(vST+2*tp,2)}, v{vAL+(tp&7)} offset:{sl*8192+(tp>>3)*256}")
        for tp in range(8): rd(tp)
        for tp in range(16):
            if tp < 8:
                rd(8+tp); self.lg(8)
            else:
                self.lg(15-tp)
            cc = "0" if u == 0 else vr(vS+4*tp, 4)
            self.e(f"v_mfma_f32_16x16x16_bf16 {vr(vS+4*tp,4)}, {vr(vST+2*tp,2)}, {vr(vQ+2*u,2)}, {cc}")
        self.release(it)
    def xrow_reduce(self, vs, tmps, op):
        for sw in ("v_permlane32_swap_b32", "v_permlane16_swap_b32"):
            for v, t in zip(vs, tmps): self.e(f"v_mov_b32 v{t}, v{v}")
            self.nop(2 if len(vs) == 1 else 1)
            for v, t in zip(vs, tmps): self.e(f"{sw} v{t}, v{v}")
            self.nop(2 if len(vs) == 1 else 1)
            for v, t in zip(vs, tmps): self.e(f"{op} v{v}, v{v}, v{t}")
    def dpp_reduce(self, vs, op, pats):
        for p in pats:
            self.nop(max(0, 3 - len(vs)))
            for v in vs:
                self.e(f"{op}_dpp v{v}, v{v}, v{v} {p} row_mask:0xf bank_mask:0xf")
    def wave_sum(self, vs, tmps):
        self.dpp_reduce(vs, "v_add_f32", [f"row_ror:{r}" for r in (8, 4, 2, 1)])
        self.nop(1)
        self.xrow_reduce(vs, tmps, "v_add_f32")
    def poll(self, issue, check, name, after=None):
        lp, ld = self.lab("poll"+name), self.lab("done"+name)
        issue()
        if after: after()
        self.wait_tok('poll')
        check()
        self.e(f"s_cbranch_vccz {ld}")
        saved = list(self.vm)
        self.e(f"{lp}:")
        self.e(f"s_cmp_eq_u32 s{sSPIN}, 0\ns_cbranch_scc1 {ld}\ns_sub_u32 s{sSPIN}, s{sSPIN}, 1\ns_sleep {self.c['SLEEP']}")
        issue()
        self.e("s_waitcnt vmcnt(0)")
        check()
        self.e(f"s_cbranch_vccnz {lp}")
        self.e(f"{ld}:")
        self.vm = saved
    def hint_bytes(self, line, n, wq=False):
        def f():
            so = sHT
            if wq:
                self.e(f"s_lshl_b32 s3, s{sWQ}, 7\ns_add_u32 s3, s3, s{sHT}"); so = 3
            self.e(f"s_buffer_load_dwordx8 s[{sH}:{sH+7}], s[{S_WS}:{S_WS+3}], s{so} offset:{line*128} {self.c['HGLC']}\ns_waitcnt lgkmcnt(0)")
            for k in range(1, n//4): self.e(f"s_or_b32 s{sH}, s{sH}, s{sH+k}")
            self.e(f"s_cmp_eq_u32 s{sH}, 0")
        return f
    def hint_store(self, line, vo, vz, wq=False):
        self.e(f"s_add_u32 s{sT}, s{sHT}, s{sI}")
        if wq: self.e(f"s_lshl_b32 s3, s{sWQ}, 7\ns_add_u32 s{sT}, s{sT}, s3")
        self.lstore([f"buffer_store_byte v{vz}, v{vo}, s[{S_WS}:{S_WS+3}], s{sT} offen offset:{line*128}"], ['hint'], self.c['LPOL'])
    def swait(self, fold, va, so, imm, name):
        e = self.e
        M0, M1, A, D, L, L2 = sH, sH+1, sH+2, sH+5, 3, sCNT
        if fold == 'pair':
            e(f"s_lshr_b64 s[{M0}:{M1}], vcc, 1\ns_or_b64 s[{M0}:{M1}], s[{M0}:{M1}], vcc\ns_and_b32 s{M0}, s{M0}, 0x55555555\ns_and_b32 s{M1}, s{M1}, 0x55555555")
        else:
            e(f"s_or_b32 s{M0}, vcc_lo, vcc_hi\ns_lshr_b32 s{M1}, s{M0}, 16\ns_or_b32 s{M0}, s{M0}, s{M1}\ns_and_b32 s{M0}, s{M0}, 0xffff\ns_mov_b32 s{M1}, 0")
        for j in range(3):
            if j == 0:
                e(f"s_ff1_i32_b64 s{L}, s[{M0}:{M1}]")
            else:
                e(f"s_ff1_i32_b64 s{L2}, s[{M0}:{M1}]\ns_cmp_lg_i32 s{L2}, -1\ns_cselect_b32 s{L}, s{L2}, s{L}")
            e(f"s_bitset0_b64 s[{M0}:{M1}], s{L}\nv_readlane_b32 s{A+j}, v{va}, s{L}")
        e("s_nop 0")
        for j in range(3): e(f"s_add_u32 s{A+j}, s{A+j}, s{so}")
        lh, lr = self.lab("sw"+name), self.lab("sr"+name)
        e(f"{lh}:")
        for j in range(3): e(f"s_buffer_load_dword s{D+j}, s[{S_WS}:{S_WS+3}], s{A+j} offset:{imm} {self.c['HGLC']}")
        e(f"""s_waitcnt lgkmcnt(0)
              s_max_u32 s{D}, s{D}, s{D+1}
              s_max_u32 s{D}, s{D}, s{D+2}
              s_cmp_lg_u32 s{D}, -1
              s_cbranch_scc1 {lr}
              s_cmp_eq_u32 s{sSPIN}, 0
              s_cbranch_scc1 {lr}
              s_sub_u32 s{sSPIN}, s{sSPIN}, 1
              s_sleep {self.c['HSLEEP']}
              s_branch {lh}
              {lr}:""")
    def mpoll(self, parts, name, after=None, hint=None, sw=None):
        if not self.c['MPOLL']:
            regs = [r for p in parts for r in p[0]]
            def issue():
                for p in parts: p[1]()
            return self.poll(issue, lambda: self.check_sent(regs, vT+1), name, after)
        lp, ld = self.lab("poll"+name), self.lab("done"+name)
        for p in parts: p[1]()
        if self.c['TSP']: self.ts(name + " iss", True)
        if after: after()
        self.wait_tok('poll')
        if self.c['TSP']:
            self.ts(name + " 1st", True)
            self.e(f"s_mov_b32 s{sCNT}, 0")
        saved = list(self.vm)
        self.e(f"{lp}:")
        if hint:
            self.check_sent([r for p in parts for r in p[0]], vT+1)
            self.e(f"s_cbranch_vccz {ld}")
            lh, lr = self.lab("hs"+name), self.lab("hr"+name)
            self.e(f"{lh}:")
            hint()
            self.e(f"s_cbranch_scc1 {lr}\ns_cmp_eq_u32 s{sSPIN}, 0\ns_cbranch_scc1 {ld}\ns_sub_u32 s{sSPIN}, s{sSPIN}, 1\ns_sleep {self.c['HSLEEP']}\ns_branch {lh}\n{lr}:")
        if len(parts) > 1: self.e(f"s_mov_b32 s{sANY}, 0")
        for k, (regs, issue) in enumerate(parts):
            sk = self.lab("sk"+name) if len(parts) > 1 else ld
            if not (hint and len(parts) == 1): self.check_sent(regs, vT+1)
            self.e(f"s_cbranch_vccz {sk}")
            if sw: sw(k)
            self.e("s_mov_b64 exec, vcc")
            issue()
            self.e("s_mov_b64 exec, -1")
            if len(parts) > 1: self.e(f"s_mov_b32 s{sANY}, 1\n{sk}:")
        if len(parts) > 1: self.e(f"s_cmp_eq_u32 s{sANY}, 0\ns_cbranch_scc1 {ld}")
        self.e(f"s_waitcnt vmcnt(0)\ns_cmp_eq_u32 s{sSPIN}, 0\ns_cbranch_scc1 {ld}\ns_sub_u32 s{sSPIN}, s{sSPIN}, 1")
        if self.c['SLEEP'] and not hint and not sw: self.e(f"s_sleep {self.c['SLEEP']}")
        if self.c['TSP']: self.e(f"s_add_u32 s{sCNT}, s{sCNT}, 1")
        self.e(f"s_branch {lp}")
        self.e(f"{ld}:")
        if self.c['TSP'] and self.tskeep(name):
            self.e(f"v_writelane_b32 v{vTS}, s{sCNT}, {self.nts}")
            self.tsnames.append(name + " cnt"); self.nts += 1
        self.vm = saved
    def check_sent(self, regs, t):
        regs = list(regs)
        self.e(f"v_max3_u32 v{t}, v{regs[0]}, v{regs[1]}, v{regs[2]}")
        k = 3
        while k < len(regs):
            if k+1 < len(regs):
                self.e(f"v_max3_u32 v{t}, v{t}, v{regs[k]}, v{regs[k+1]}"); k += 2
            else:
                self.e(f"v_max_u32 v{t}, v{t}, v{regs[k]}"); k += 1
        self.e(f"v_cmp_eq_u32 vcc, -1, v{t}")

P8 = ["quad_perm:[1,0,3,2]", "quad_perm:[2,3,0,1]", "row_half_mirror"]

def build(cfg=None):
    c = dict(DEFAULT); c.update(cfg or {})
    set_lds_map(c['DEPTH'])
    AL = c['DEPTH'] == 3
    g = G(c); e = g.e
    if AL: g.reserve(2)
    NH = c['NH']
    homeA = HOMES[:NH[0]]; homeB = HOMES[NH[0]:NH[0]+NH[1]]
    assert len(homeB) == NH[1]
    plan = {}
    for l in range(4):
        hm = homeA if l % 2 == 0 else homeB
        p = []
        for t in range(16):
            if t < len(hm): p.append((hm[t], l < 2))
            else: p.append((None, True))
        if l == 3:
            for k in range(min(c['XH3'], len(homeA))):
                t = len(hm) + k
                if t < 16: p[t] = (homeA[k], True)
        plan[l] = p

    e(f"s_cmp_ge_u32 s2, 256\ns_cbranch_scc1 Lend")
    if c['REMAP']:
        e("s_and_b32 s3, s2, 7\ns_lshl_b32 s3, s3, 3\ns_bfe_u32 s4, s2, 0x30003\ns_or_b32 s3, s3, s4\ns_and_b32 s2, s2, 0xc0\ns_or_b32 s2, s2, s3")
    e("s_load_dwordx16 s[72:87], s[0:1], 0\ns_load_dwordx8 s[88:95], s[0:1], 64\ns_load_dwordx2 s[96:97], s[0:1], 96")
    e(f"v_lshrrev_b32 v{vT}, 6, v0\nv_and_b32 v{vLANE}, 63, v0\ns_nop 1\nv_readfirstlane_b32 s{sWV}, v{vT}")
    e(f"s_and_b32 s{sHKV}, s2, 7\ns_lshr_b32 s{sI}, s2, 3\ns_lshr_b32 s{sG}, s{sWV}, 1")
    e(f"s_mov_b32 s{sSPIN}, {c['SPIN']}\ns_mov_b32 s{sC}, {f32(0.0625*math.log2(math.e))}")
    e(f"s_mov_b32 s{sM56}, -1\ns_mov_b32 s{sM56+1}, 0x00ffffff\ns_mov_b32 s{sMC2}, 0x00030003\ns_mov_b32 s{sMC2+1}, 0x00030003")
    e(f"""v_lshrrev_b32 v{vT}, 5, v{vLANE}
          v_and_b32 v{vT+1}, 31, v{vLANE}
          v_lshlrev_b32 v{vDVO+1}, 1, v{vT}
          v_xor_b32 v{vT+1}, v{vT+1}, v{vDVO+1}
          v_lshlrev_b32 v{vT+1}, 4, v{vT+1}
          v_lshl_add_u32 v{vDVO}, v{vT}, 9, v{vT+1}
          v_xor_b32 v{vDVO+1}, 64, v{vDVO}
          v_xor_b32 v{vDVO+2}, 0x80, v{vDVO}
          v_xor_b32 v{vDVO+3}, 0xc0, v{vDVO}""")
    assert c['DEPTH'] <= 3
    e(f"s_mul_i32 s{sRING}, s{sWV}, {c['DEPTH']*8192}")
    e(f"v_mov_b32 v{vTS}, 0")
    e(f"v_and_b32 v{vT}, 15, v{vLANE}\nv_lshlrev_b32 v{vT}, 2, v{vT}\nv_add_u32 v{vT}, {L_FLAG}, v{vT}\nds_write_b32 v{vT}, v{vTS}")
    e("s_waitcnt lgkmcnt(0)\ns_barrier")
    e(f"s_lshr_b32 s3, s{sI}, 3\ns_lshl_b32 s{sT}, s{sG}, 2\ns_add_u32 s{sT}, s{sT}, s3")
    e(f"s_lshl_b32 s{sT}, s{sT}, 3\ns_add_u32 s{sT}, s{sT}, s{sHKV}\ns_lshl_b32 s3, s{sT}, 21")
    def srd(dst, src, size, addoff=False):
        if addoff:
            e(f"s_add_u32 s{dst}, s{src}, s3\ns_addc_u32 s{dst+1}, s{src+1}, 0\ns_and_b32 s{dst+1}, s{dst+1}, 0xffff")
        else:
            e(f"s_mov_b32 s{dst}, s{src}\ns_and_b32 s{dst+1}, s{src+1}, 0xffff")
        e(f"s_mov_b32 s{dst+2}, {size}\ns_mov_b32 s{dst+3}, 0x00020000")
    srd(S_KA, 74, 1 << 21, True); srd(S_VA, 76, 1 << 21, True)
    srd(S_KB, 84, 1 << 21, True); srd(S_VB, 86, 1 << 21, True)
    srd(S_WQA, 78, 448*4096*2); srd(S_WOA, 80, 448*4096*2)
    srd(S_WQB, 88, 448*4096*2); srd(S_WOB, 90, 448*4096*2)
    srd(S_WS, 96, WS_SIZE); srd(S_DBG, 94, 256); srd(S_X, 72, 7168); srd(S_OUT, 92, 7168)
    e(f"s_lshr_b32 s{sBB}, s{sI}, 3\ns_and_b32 s{sWQ}, s{sWV}, 1\ns_mov_b32 s{sSPINL}, {c['SPINL']}")
    e(f"s_lshl_b32 s{sFLO}, s{sWV}, 2\ns_add_u32 s{sFLO}, s{sFLO}, {L_FLAG}\ns_xor_b32 s{sFLP}, s{sFLO}, 4")
    e(f"s_mov_b32 s{sLO}, 0x00003f80\ns_mov_b32 s{sHI}, 0x3f800000\ns_min_u32 s{sNQ}, s{sI}, 27")
    e(f"s_getreg_b32 s{sXCC}, hwreg(HW_REG_XCC_ID, 0, 4)\ns_lshl_b32 s{sXCC}, s{sXCC}, 1\ns_or_b32 s{sXCC}, s{sXCC}, 1\ns_mov_b32 s{sLOC}, 0")
    assert L_FLAG % 8 == 0
    e(f"s_and_b32 s{sT}, s{sI}, 7\ns_lshl_b32 s{sT}, s{sT}, 1\ns_add_u32 s{sT}, s{sT}, s{sWQ}\ns_mul_i32 s{sTOFF}, s{sT}, {c['CSTR']}")
    if c['ROT']:
        e(f"s_lshr_b32 s{sT}, s2, 3\ns_add_u32 s{sT}, s{sT}, s{sHKV}\ns_mul_i32 s{sT}, s{sT}, {c['ROT']}\ns_and_b32 s{sT}, s{sT}, 15\ns_mul_i32 s{sROT}, s{sT}, {c['TSTR']}")
    e(f"s_lshl_b32 s{sT}, s{sHKV}, 1\ns_add_u32 s{sT}, s{sT}, s{sWQ}\ns_mul_i32 s{sWOOFF}, s{sT}, {256*896}\ns_lshl_b32 s{sT}, s{sNQ}, 5\ns_add_u32 s{sWOOFF}, s{sWOOFF}, s{sT}")
    e(f"s_mul_i32 s{sWQOFF}, s{sWQ}, {224*8192}\ns_lshl_b32 s{sT}, s{sHKV}, 10\ns_add_u32 s{sWQOFF}, s{sWQOFF}, s{sT}\ns_lshl_b32 s{sT}, s{sI}, 5\ns_add_u32 s{sWQOFF}, s{sWQOFF}, s{sT}")
    e(f"s_mul_i32 s{sGB}, s{sG}, {GSZ}")
    e(f"s_mul_i32 s{sT}, s{sHKV}, {HSZ}\ns_add_u32 s{sOPRD}, s{sGB}, s{sT}")
    if c['OPL'] == 0:
        e(f"s_lshr_b32 s{sT}, s{sI}, 4\ns_lshl_b32 s{sT}, s{sT}, 13\ns_add_u32 s{sOPWR}, s{sOPRD}, s{sT}\ns_and_b32 s{sT}, s{sI}, 15\ns_lshl_b32 s{sT}, s{sT}, 6\ns_add_u32 s{sOPWR}, s{sOPWR}, s{sT}")
        e(f"s_lshl_b32 s{sT}, s{sWQ}, 14\ns_add_u32 s{sOPWR}, s{sOPWR}, s{sT}")
    else:
        e(f"s_lshl_b32 s{sT}, s{sI}, 9\ns_add_u32 s{sOPWR}, s{sOPRD}, s{sT}\ns_lshl_b32 s{sT}, s{sWQ}, 14\ns_add_u32 s{sOPWR}, s{sOPWR}, s{sT}")
    MLS = 8192 if c['MLX'] else 512
    if c['MLX']:
        e(f"s_add_u32 s{sMLRD}, s{sOPRD}, {0x28000}\ns_lshl_b32 s{sT}, s{sWQ}, 7\ns_add_u32 s{sMLRD}, s{sMLRD}, s{sT}")
        e(f"s_lshl_b32 s{sT}, s{sI}, 8\ns_add_u32 s{sMLWR}, s{sMLRD}, s{sT}")
    else:
        e(f"s_add_u32 s{sMLRD}, s{sOPRD}, {W_ML}\ns_lshl_b32 s{sT}, s{sWQ}, 3\ns_add_u32 s{sMLRD}, s{sMLRD}, s{sT}")
        e(f"s_lshl_b32 s{sT}, s{sI}, 4\ns_add_u32 s{sMLWR}, s{sMLRD}, s{sT}")
    e(f"s_lshl_b32 s{sT}, s{sNQ}, {7 if c['XPL'] else 5}\ns_add_u32 s{sXPWR}, s{sOPRD}, s{sT}\ns_add_u32 s{sXPWR}, s{sXPWR}, {W_XP}")
    e(f"s_lshl_b32 s{sT}, s{sG}, 3\ns_add_u32 s{sT}, s{sT}, s{sHKV}\ns_lshl_b32 s{sT}, s{sT}, 11\ns_add_u32 s{sHT}, s{sT}, {W_HT}")
    if c['XPL']: e(f"s_lshl_b32 s{sQRD}, s{sBB}, 5\ns_lshl_b32 s{sQWR}, s{sI}, 7")
    else:        e(f"s_lshl_b32 s{sQRD}, s{sBB}, 10\ns_lshl_b32 s{sQWR}, s{sI}, 5")
    e(f"s_lshl_b32 s{sT}, s{sG}, 3\ns_add_u32 s{sT}, s{sT}, s{sHKV}\ns_mul_i32 s{sXSB}, s{sT}, 0x3000\ns_add_u32 s{sXSB}, s{sXSB}, {W_XS}")
    def qbase(l, dst, rel):
        if l == 0:
            e(f"s_lshl_b32 s{dst}, s{sG}, 3\ns_add_u32 s{dst}, s{dst}, s{sHKV}\ns_lshl_b32 s{dst}, s{dst}, 12\ns_add_u32 s{dst}, s{dst}, {W_Q0}\ns_add_u32 s{dst}, s{dst}, s{rel}")
        else:
            e(f"s_add_u32 s{dst}, s{sOPRD}, {W_Q+(l-1)*4096}\ns_add_u32 s{dst}, s{dst}, s{rel}")

    Q = []
    for l in range(4):
        for t in range(16):
            if plan[l][t][1]: Q.append(('K', l, t))
        for t in range(16): Q.append(('V', l, t))
    if c['MVB']:
        pre = [('K', 1, t) for t in range(c['MVB'])]
        Q = [x for x in Q if x not in pre]
        Q = Q[:c['MV0']] + pre + Q[c['MV0']:]
    g.q = Q

    g.ts("start")
    def xoff(dst):
        e(f"s_lshl_b32 s{dst}, s{sG}, 1\ns_add_u32 s{dst}, s{dst}, s{sWQ}\ns_mul_i32 s{dst}, s{dst}, 1792")
    xoff(sT)
    e(f"v_lshlrev_b32 v{vT}, 4, v{vLANE}\nv_mov_b32 v{vT+1}, {OOB}\nv_cndmask_b32 v{vT}, v{vT+1}, v{vT}, s[{sM56}:{sM56+1}]")
    g.vmem(f"buffer_load_dwordx4 {vr(vST,4)}, v{vT}, s[{S_X}:{S_X+3}], s{sT} offen", 'x')
    g.vmem(f"buffer_load_dwordx4 {vr(vST+4,4)}, v{vT}, s[{S_X}:{S_X+3}], s{sT} offen offset:896", 'x')
    def w_voff(kind, dst, tmp):
        if kind == 'WO': e(f"v_lshrrev_b32 v{dst}, 1, v{vLANE}\nv_mul_u32_u24 v{dst}, 896, v{dst}")
        else:            e(f"v_lshrrev_b32 v{dst}, 1, v{vLANE}\nv_lshlrev_b32 v{dst}, 13, v{dst}")
        e(f"v_and_b32 v{tmp}, 1, v{vLANE}\nv_lshl_add_u32 v{dst}, v{tmp}, 4, v{dst}")
    def w_load(kind, p, va, tok):
        srd = {('WO',0):S_WOA, ('WO',1):S_WOB, ('WQ',0):S_WQA, ('WQ',1):S_WQB}[(kind, p)]
        n, step, base = (8, 32*896, sWOOFF) if kind == 'WO' else (7, 32*8192, sWQOFF)
        lb, hs = (L_WO + p*16384, 8192) if kind == 'WO' else (L_WQ + p*14336, 7168)
        e(f"s_mul_i32 s{sT2}, s{sWQ}, {hs}\ns_add_u32 s{sT2}, s{sT2}, {lb}")
        for k in range(n):
            e(f"s_add_u32 m0, s{sT2}, {k*1024}\ns_add_u32 s{sT}, s{base}, {k*step}")
            g.vmem(f"buffer_load_dwordx4 v{va}, s[{srd}:{srd+3}], s{sT} offen {c['WPOL']} lds", tok)
    w_voff('WQ', vT, vT+1)
    e(f"s_mul_i32 s{sT2}, s{sWQ}, 7168\ns_add_u32 s{sT2}, s{sT2}, {L_WQ}")
    for k in range(4):
        e(f"""s_lshl_b32 s{sT3}, s{sG}, 2
              s_add_u32 s{sT3}, s{sT3}, {k}
              s_min_u32 s{sT3}, s{sT3}, 6
              s_lshl_b32 s{sT}, s{sT3}, 10
              s_add_u32 m0, s{sT2}, s{sT}
              s_lshl_b32 s{sT}, s{sT3}, 18
              s_add_u32 s{sT}, s{sT}, s{sWQOFF}""")
        g.vmem(f"buffer_load_dwordx4 v{vT}, s[{S_WQA}:{S_WQA+3}], s{sT} offen {c['WPOL']} lds", 'wqa')
    e(f"s_mul_i32 s{sT}, s{sI}, 6144\ns_add_u32 s{sT}, s{sT}, s{sOPRD}\ns_lshl_b32 s{sT2}, s{sWQ}, 10\ns_add_u32 s{sT}, s{sT}, s{sT2}")
    e(f"v_lshlrev_b32 v{vT}, 4, v{vLANE}")
    for k in range(4): e(f"v_mov_b32 v{vST+8+k}, -1")
    for k in range(3):
        g.vmem(f"buffer_store_dwordx4 {vr(vST+8,4)}, v{vT}, s[{S_WS}:{S_WS+3}], s{sT} offen offset:{k*2048 if k < 2 else 0} sc1" if k < 2 else
               f"buffer_store_dwordx4 {vr(vST+8,4)}, v{vT}, s[{S_WS}:{S_WS+3}], s{sT2} offen sc1", 'fill')
        if k == 1: e(f"s_add_u32 s{sT2}, s{sT}, 4096")
    if c['XS2']:
        e(f"""v_lshrrev_b32 v{vT}, 3, v{vLANE}
              v_lshlrev_b32 v{vT}, 12, v{vT}
              v_and_b32 v{vT+1}, 7, v{vLANE}
              v_lshl_add_u32 v{vT}, v{vT+1}, 4, v{vT}
              s_cmp_eq_u32 s{sWQ}, 0
              s_cselect_b32 s{sT}, 24, 0
              v_cmp_gt_u32 vcc, s{sT}, v{vLANE}
              v_mov_b32 v{vT+1}, {OOB}
              s_lshl_b32 s{sT}, s{sI}, 7
              s_add_u32 s{sT}, s{sT}, s{sXSB}
              v_cndmask_b32 v{vT}, v{vT+1}, v{vT}, vcc""")
        g.vmem(f"buffer_store_dwordx4 {vr(vST+8,4)}, v{vT}, s[{S_WS}:{S_WS+3}], s{sT} offen sc1", 'fill')
    if any(c['HINT']):
        e(f"""v_lshlrev_b32 v{vT}, 4, v{vLANE}
              s_cmp_eq_u32 s{sWQ}, 0
              s_cselect_b32 s{sT}, 8, 0
              s_cmp_lt_u32 s{sI}, 16
              s_cselect_b32 s{sT}, s{sT}, 0
              v_cmp_gt_u32 vcc, s{sT}, v{vLANE}
              v_mov_b32 v{vT+1}, {OOB}
              s_lshl_b32 s{sT}, s{sI}, 7
              s_add_u32 s{sT}, s{sT}, s{sHT}
              v_cndmask_b32 v{vT}, v{vT+1}, v{vT}, vcc""")
        g.vmem(f"buffer_store_dwordx4 {vr(vST+8,4)}, v{vT}, s[{S_WS}:{S_WS+3}], s{sT} offen sc1", 'fill')
    g.pump()
    g.wait_tok('x')
    for k in range(8):
        e(f"v_lshlrev_b32 v{vX+2*k}, 16, v{vST+k}\nv_and_b32 v{vX+2*k+1}, 0xffff0000, v{vST+k}")

    WOF = 64
    WQF = 96
    def read_w(kind, p, dst, t0, t1):
        g.cmt(f"read {kind}{p} fragments")
        nst = 8 if kind == 'WO' else 7
        lb, hs = (L_WO + p*16384, 8192) if kind == 'WO' else (L_WQ + p*14336, 7168)
        e(f"""v_lshrrev_b32 v{t0}, 4, v{vLANE}
              v_lshlrev_b32 v{t0}, 8, v{t0}
              v_bfe_u32 v{t1}, v{vLANE}, 2, 2
              v_lshl_add_u32 v{t0}, v{t1}, 5, v{t0}
              v_and_b32 v{t1}, 3, v{vLANE}
              v_lshl_add_u32 v{t0}, v{t1}, 3, v{t0}
              s_mul_i32 s{sT}, s{sWQ}, {hs}
              s_add_u32 s{sT}, s{sT}, {lb}
              v_add_u32 v{t0}, s{sT}, v{t0}""")
        n = 0
        for st in range(nst):
            for hf in range(2):
                e(f"ds_read_b64_tr_b16 {vr(dst+4*st+2*hf,2)}, v{t0} offset:{st*1024+hf*128}")
                n += 1
                if n == 8: g.lg(4)
        g.lg(0)
    def lds_wait(addr_code, val):
        lp, ld = g.lab("lw"), g.lab("lwd")
        addr_code()
        e(f"""{lp}:
              ds_read_b32 v{vT+1}, v{vT}
              s_waitcnt lgkmcnt(0)
              v_cmp_gt_u32 vcc, {val}, v{vT+1}
              s_cbranch_vccz {ld}
              s_cmp_eq_u32 s{sSPINL}, 0
              s_cbranch_scc1 {ld}
              s_sub_u32 s{sSPINL}, s{sSPINL}, 1
              s_sleep 2
              s_branch {lp}
              {ld}:""")

    def reduce_store(rbuf, voff_code, soff, tok, extra_cond=None, pol="sc1", hline=None):
        R = 64
        t = vT
        e(f"""s_lshl_b32 s{sT}, s{sG}, 9
              s_add_u32 s{sT}, s{sT}, {rbuf}
              v_and_b32 v{t}, 7, v{vLANE}
              v_lshlrev_b32 v{t}, 5, v{t}
              v_add_u32 v{t}, s{sT}, v{t}""")
        for w in range(2):
            e(f"ds_read_b128 {vr(R+8*w,4)}, v{t} offset:{w*256}\nds_read_b128 {vr(R+8*w+4,4)}, v{t} offset:{w*256+16}")
        voff_code(t+1, R+16)
        e(f"s_cmp_eq_u32 s{sWQ}, 0\ns_cselect_b32 s{sT}, 8, 0")
        if extra_cond: extra_cond()
        e(f"""v_cmp_gt_u32 vcc, s{sT}, v{vLANE}
              v_mov_b32 v{R+16}, {OOB}
              s_nop 0
              v_cndmask_b32 v{t+1}, v{R+16}, v{t+1}, vcc""")
        g.lg(0)
        for k in range(8): e(f"v_add_f32 v{R+k}, v{R+k}, v{R+8+k}")
        for k in range(4): e(f"v_cvt_pk_bf16_f32 v{R+8+k}, v{R+2*k}, v{R+2*k+1}")
        for k in range(4): e(f"v_min_u32 v{R+8+k}, -2, v{R+8+k}")
        if hline is not None:
            e(f"""s_min_u32 s{sT}, s{sT}, 1
                  v_cmp_gt_u32 vcc, s{sT}, v{vLANE}
                  v_mov_b32 v{R+17}, {OOB}
                  v_mov_b32 v{R+18}, 0
                  v_cndmask_b32 v{R+17}, v{R+17}, v{R+18}, vcc""")
        g.lstore([f"buffer_store_dwordx4 {vr(R+8,4)}, v{t+1}, s[{S_WS}:{S_WS+3}], s{soff} offen"], [tok], pol)
        if hline is not None: g.hint_store(hline, R+17, R+18)

    def s2_compute(l):
        g.cmt(f"S2 compute -> Q[{l}]")
        d = 64
        t0, t1, u0, u1 = 80, 81, 82, 83
        for ee, t in ((0, t0), (1, t1)):
            x = vX + 8*ee
            e(f"v_add_f32 v{t}, v{x}, v{x+1}")
            for k in range(2, 8): e(f"v_add_f32 v{t}, v{t}, v{x+k}")
        g.wave_sum([t0, t1], [u0, u1])
        e(f"v_mul_f32 v{t0}, {f32(1.0/448)}, v{t0}\nv_mul_f32 v{t1}, {f32(1.0/448)}, v{t1}")
        for ee, t in ((0, t0), (1, t1)):
            for k in range(8): e(f"v_sub_f32 v{d+8*ee+k}, v{vX+8*ee+k}, v{t}")
        for ee, t in ((0, t0), (1, t1)):
            e(f"v_mul_f32 v{t}, v{d+8*ee}, v{d+8*ee}")
            for k in range(1, 8): e(f"v_fmac_f32 v{t}, v{d+8*ee+k}, v{d+8*ee+k}")
        e(f"v_cndmask_b32 v{t0}, 0, v{t0}, s[{sM56}:{sM56+1}]\nv_cndmask_b32 v{t1}, 0, v{t1}, s[{sM56}:{sM56+1}]")
        g.wave_sum([t0, t1], [u0, u1])
        e(f"""v_mov_b32 v{u0}, {f32(1e-5)}
              v_mov_b32 v{u1}, {f32(1e-5)}
              v_fmac_f32 v{u0}, {f32(1.0/448)}, v{t0}
              v_fmac_f32 v{u1}, {f32(1.0/448)}, v{t1}
              v_rsq_f32 v{u0}, v{u0}
              v_rsq_f32 v{u1}, v{u1}
              s_nop 0""")
        for ee, u in ((0, u0), (1, u1)):
            for k in range(8): e(f"v_mul_f32 v{d+8*ee+k}, v{d+8*ee+k}, v{u}")
        pk = 84
        for ee in range(2):
            for k in range(4): e(f"v_cvt_pk_bf16_f32 v{pk+4*ee+k}, v{d+8*ee+2*k}, v{d+8*ee+2*k+1}")
        if AL: e(f"s_add_u32 s{sT}, s{sRING}, {16384 + 2048}")
        else:  e(f"s_lshl_b32 s{sT}, s{sWV}, 11\ns_add_u32 s{sT}, s{sT}, {L_XN}")
        e(f"""v_lshlrev_b32 v{vT}, 4, v{vLANE}
              v_add_u32 v{vT}, s{sT}, v{vT}
              ds_write_b128 v{vT}, {vr(pk,4)}
              ds_write_b128 v{vT}, {vr(pk+4,4)} offset:1024""")
        if l == 0:
            g.wait_tok('wqa')
            g.lg(0)
            e("s_barrier")
            read_w('WQ', 0, WQF, 124, 125)
        else:
            g.pair_sync()
        if AL:
            e(f"""v_and_b32 v{vT}, 1, v{vLANE}
                  v_lshlrev_b32 v{vT}, 10, v{vT}
                  v_bfe_u32 v{vT+1}, v{vLANE}, 1, 1
                  v_mul_u32_u24 v{vT+1}, 24576, v{vT+1}
                  v_add_u32 v{vT}, v{vT}, v{vT+1}
                  s_mul_i32 s{sT}, s{sG}, 49152
                  s_add_u32 s{sT}, s{sT}, {16384 + 2048}""")
        else:
            e(f"""v_and_b32 v{vT}, 3, v{vLANE}
                  v_lshlrev_b32 v{vT}, 10, v{vT}
                  s_lshl_b32 s{sT}, s{sG}, 12
                  s_add_u32 s{sT}, s{sT}, {L_XN}""")
        e(f"""v_lshrrev_b32 v{vT+1}, 4, v{vLANE}
              v_lshl_add_u32 v{vT}, v{vT+1}, 4, v{vT}
              s_mul_i32 s{sT2}, s{sWQ}, 448
              s_add_u32 s{sT}, s{sT}, s{sT2}
              v_add_u32 v{vT}, s{sT}, v{vT}""")
        XB, D = 32, 92
        for st in range(7): e(f"ds_read_b128 {vr(XB+4*st,4)}, v{vT} offset:{st*64}")
        for st in range(7):
            g.lg(6-st)
            cc = "0" if st == 0 else vr(D, 4)
            e(f"v_mfma_f32_16x16x32_bf16 {vr(D,4)}, {vr(WQF+4*st,4)}, {vr(XB+4*st,4)}, {cc}")
        e(f"""v_and_b32 v{vT}, 3, v{vLANE}
              v_lshlrev_b32 v{vT}, 6, v{vT}
              v_lshrrev_b32 v{vT+1}, 4, v{vLANE}
              v_lshl_add_u32 v{vT}, v{vT+1}, 4, v{vT}
              s_lshl_b32 s{sT}, s{sWV}, 8
              s_add_u32 s{sT}, s{sT}, {L_RBUF2}
              v_add_u32 v{vT}, s{sT}, v{vT}""")
        g.nop(8)
        e(f"ds_write_b128 v{vT}, {vr(D,4)}")
        g.pair_sync()
        if AL: g.resv = None; g.resv_all = False
        qbase(l, sT2, sQWR)
        def voff(dst, tmp):
            if c['XPL']:
                e(f"v_lshlrev_b32 v{dst}, 4, v{vLANE}"); return
            e(f"v_lshrrev_b32 v{dst}, 1, v{vLANE}\nv_lshlrev_b32 v{dst}, 10, v{dst}\nv_and_b32 v{tmp}, 1, v{vLANE}\nv_lshl_add_u32 v{dst}, v{tmp}, 4, v{dst}")
        reduce_store(L_RBUF2, voff, sT2, ('qst', l), pol=c['LPOL'] if l > 0 else "sc1", hline=(l-1)*4+3 if (l > 0 and c['HINT'][3]) else None)

    def load_q(l, after=None):
        g.cmt(f"load q for layer {l}")
        qbase(l, sT2, sQRD)
        if c['XPL']:
            e(f"v_lshrrev_b32 v{vT}, 1, v{vLANE}\nv_lshlrev_b32 v{vT}, 7, v{vT}\nv_and_b32 v{vT+1}, 1, v{vLANE}\nv_lshl_add_u32 v{vT}, v{vT+1}, 4, v{vT}")
        else:
            e(f"v_lshlrev_b32 v{vT}, 4, v{vLANE}")
        R = vST
        def issue(): g.vmem(f"buffer_load_dwordx4 {vr(R,4)}, v{vT}, s[{S_WS}:{S_WS+3}], s{sT2} offen sc1", 'poll')
        if l == 0:
            issue()
            if after:
                after()
                qbase(l, sT2, sQRD)
            g.wait_tok('poll')
        else:
            g.mpoll([(list(range(R, R+4)), issue)], f"q{l}", None, g.hint_bytes((l-1)*4+3, 32) if c['HINT'][3] else None,
                    (lambda k: g.swait('pair', vT, sT2, 0, f"q{l}")) if c['SW'][2] else None)
        e(f"s_lshl_b32 s{sT}, s{sG}, 10\ns_add_u32 s{sT}, s{sT}, {L_QBUF}\nv_lshlrev_b32 v{vT}, 4, v{vLANE}\nv_add_u32 v{vT}, s{sT}, v{vT}\nds_write_b128 v{vT}, {vr(R,4)}")
        e(f"""v_and_b32 v{vT+1}, 1, v{vLANE}
              v_lshlrev_b32 v{vT+1}, 9, v{vT+1}
              v_bfe_u32 v{vT}, v{vLANE}, 4, 1
              v_lshl_add_u32 v{vT+1}, v{vT}, 4, v{vT+1}
              v_lshrrev_b32 v{vT}, 5, v{vLANE}
              v_lshl_add_u32 v{vT+1}, v{vT}, 8, v{vT+1}
              v_add_u32 v{vT+1}, s{sT}, v{vT+1}""")
        g.lg(0)
        for j in range(8): e(f"ds_read_b128 {vr(vQ+4*j,4)}, v{vT+1} offset:{j*32}")
        g.lg(0)

    moved = set()
    def early_moves(l, n):
        for t in range(16):
            if n <= 0: break
            hm, ld = plan[l][t]
            it = ('K', l, t)
            if hm is not None and ld and it not in moved and it in g.slot:
                g.k_move(it, hm); moved.add(it); n -= 1

    XG = list(range(32, 64)) + list(range(128, 160))
    def xp_gather(l, after=None):
        g.cmt("XP gather")
        if c['XPL']:
            e(f"""s_lshl_b32 s{sT}, s{sWQ}, 6
                  v_lshrrev_b32 v{vT}, 1, v{vLANE}
                  v_lshlrev_b32 v{vT}, 7, v{vT}
                  v_and_b32 v{vT+1}, 1, v{vLANE}
                  v_lshl_add_u32 v{vT}, v{vT+1}, 4, v{vT}""")
        else:
            e(f"""s_mul_i32 s{sT}, s{sWQ}, 1792
                  v_lshlrev_b32 v{vT}, 4, v{vLANE}""")
        e(f"""v_add_u32 v{vT}, s{sT}, v{vT}
              v_mov_b32 v{vT+1}, {OOB}
              v_cndmask_b32 v{vT}, v{vT+1}, v{vT}, s[{sM56}:{sM56+1}]
              s_add_u32 s{sT2}, s{sGB}, {W_XP + l*3584}""")
        EOFF = 32 if c['XPL'] else 896
        if c['XS2']:
            assert c['XPL']
            e(f"s_add_u32 s{sT2}, s{sXSB}, {l*4096}")
            a = XG[0]
            def issue():
                g.vmem(f"buffer_load_dwordx4 {vr(a,4)}, v{vT}, s[{S_WS}:{S_WS+3}], s{sT2} offen sc1", 'poll')
                g.vmem(f"buffer_load_dwordx4 {vr(a+4,4)}, v{vT}, s[{S_WS}:{S_WS+3}], s{sT2} offen offset:{EOFF} sc1", 'poll')
            g.mpoll([(XG[0:8], issue)], f"s2_{l}", after, g.hint_bytes(l*4+2, 28) if c['HINT'][2] else None,
                    (lambda k: g.swait('pair', vT, sT2, 0, f"s2_{l}")) if c['SW'][1] else None)
            g.ts(f"S2_{l} got")
            for ee in range(2):
                for k in range(4):
                    r = a + 4*ee + k
                    e(f"v_dot2c_f32_bf16 v{vX+8*ee+2*k}, s{sLO}, v{r}\nv_dot2c_f32_bf16 v{vX+8*ee+2*k+1}, s{sHI}, v{r}")
            return
        def part(hk):
            a = XG[8*hk]
            def issue():
                so = sT2
                if hk:
                    e(f"s_add_u32 s{sT3}, s{sT2}, {hk*HSZ}"); so = sT3
                g.vmem(f"buffer_load_dwordx4 {vr(a,4)}, v{vT}, s[{S_WS}:{S_WS+3}], s{so} offen sc1", 'poll')
                g.vmem(f"buffer_load_dwordx4 {vr(a+4,4)}, v{vT}, s[{S_WS}:{S_WS+3}], s{so} offen offset:{EOFF} sc1", 'poll')
            return (XG[8*hk:8*hk+8], issue)
        g.mpoll([part(hk) for hk in range(8)], f"s2_{l}", after)
        g.ts(f"S2_{l} got")
        for hk in range(8):
            for ee in range(2):
                for k in range(4):
                    a = XG[8*hk] + 4*ee + k
                    e(f"v_dot2c_f32_bf16 v{vX+8*ee+2*k}, s{sLO}, v{a}\nv_dot2c_f32_bf16 v{vX+8*ee+2*k+1}, s{sHI}, v{a}")

    def xs_reduce(l):
        g.cmt("XS reduce")
        skip = g.lab("xs")
        e(f"s_cmp_lg_u32 s{sWQ}, 0\ns_cbranch_scc1 {skip}\ns_cmp_ge_u32 s{sI}, 28\ns_cbranch_scc1 {skip}")
        if l == 3: e(f"s_and_b32 s{sT}, s{sI}, 7\ns_cmp_lg_u32 s{sT}, s{sHKV}\ns_cbranch_scc1 {skip}")
        saved = list(g.vm)
        P, F, T = 32, 40, 48
        e(f"""v_lshrrev_b32 v{vT}, 3, v{vLANE}
              v_mul_u32_u24 v{vT}, {HSZ}, v{vT}
              v_and_b32 v{vT+1}, 7, v{vLANE}
              v_lshl_add_u32 v{vT}, v{vT+1}, 4, v{vT}
              s_lshl_b32 s{sT2}, s{sI}, 7
              s_add_u32 s{sT2}, s{sT2}, s{sGB}
              s_add_u32 s{sT2}, s{sT2}, {W_XP + l*3584}""")
        def issue(): g.vmem(f"buffer_load_dwordx4 {vr(P,4)}, v{vT}, s[{S_WS}:{S_WS+3}], s{sT2} offen sc1", 'poll')
        def pre():
            if l < 3: return
            e(f"""s_lshl_b32 s{sT}, s{sG}, 8
                  s_add_u32 s{sT}, s{sT}, {L_XB}
                  v_and_b32 v{T}, 7, v{vLANE}
                  v_lshlrev_b32 v{T}, 5, v{T}
                  v_add_u32 v{T}, s{sT}, v{T}
                  ds_read_b128 {vr(56,4)}, v{T}
                  ds_read_b128 {vr(60,4)}, v{T} offset:16""")
        def hint_xp():
            e(f"s_add_u32 s3, s{sT2}, {4*HSZ}")
            for hk in range(8):
                e(f"s_buffer_load_dword s{sH+hk}, s[{S_WS}:{S_WS+3}], s{sT2 if hk < 4 else 3} offset:{(hk&3)*HSZ + 124} glc")
            e("s_waitcnt lgkmcnt(0)")
            for hk in range(1, 8): e(f"s_max_u32 s{sH}, s{sH}, s{sH+hk}")
            e(f"s_cmp_lg_u32 s{sH}, -1")
        g.mpoll([(list(range(P, P+4)), issue)], f"xs_{l}", pre, hint_xp if c['HINT'][1] else None)
        g.ts(f"XS_{l} got")
        for k in range(4): e(f"v_lshlrev_b32 v{F+2*k}, 16, v{P+k}\nv_and_b32 v{F+2*k+1}, 0xffff0000, v{P+k}")
        fs = list(range(F, F+8))
        g.dpp_reduce(fs, "v_add_f32", ["row_ror:8"])
        g.nop(1)
        g.xrow_reduce(fs, list(range(T, T+8)), "v_add_f32")
        if l == 3:
            g.lg(0)
            for k in range(8): e(f"v_add_f32 v{F+k}, v{F+k}, v{56+k}")
        for k in range(4): e(f"v_cvt_pk_bf16_f32 v{P+k}, v{F+2*k}, v{F+2*k+1}")
        if l < 3:
            for k in range(4): e(f"v_min_u32 v{P+k}, -2, v{P+k}")
            e(f"""v_lshlrev_b32 v{vT}, 4, v{vLANE}
                  s_lshl_b32 s{sT2}, s{sI}, 7
                  s_add_u32 s{sT2}, s{sT2}, s{sXSB}
                  s_add_u32 s{sT2}, s{sT2}, {l*4096}""")
        else:
            e(f"""v_lshrrev_b32 v{vT}, 1, v{vLANE}
                  v_mul_u32_u24 v{vT}, 896, v{vT}
                  v_and_b32 v{vT+1}, 1, v{vLANE}
                  v_lshl_add_u32 v{vT}, v{vT+1}, 4, v{vT}
                  s_mul_i32 s{sT2}, s{sG}, 3584
                  s_lshl_b32 s{sT}, s{sI}, 5
                  s_add_u32 s{sT2}, s{sT2}, s{sT}""")
        e(f"""v_cmp_gt_u32 vcc, 8, v{vLANE}
              v_mov_b32 v{vT+1}, {OOB}
              s_nop 0
              v_cndmask_b32 v{vT}, v{vT+1}, v{vT}, vcc""")
        if l < 3: g.lstore([f"buffer_store_dwordx4 {vr(P,4)}, v{vT}, s[{S_WS}:{S_WS+3}], s{sT2} offen"], ['xsst'], c['LPOL'])
        else:     g.vmem(f"buffer_store_dwordx4 {vr(P,4)}, v{vT}, s[{S_OUT}:{S_OUT+3}], s{sT2} offen", 'out')
        if l < 3 and c['HINT'][2]:
            e(f"""v_cmp_eq_u32 vcc, 0, v{vLANE}
                  v_mov_b32 v{T}, {OOB}
                  v_mov_b32 v{T+1}, 0
                  v_cndmask_b32 v{T}, v{T}, v{T+1}, vcc""")
            g.hint_store(l*4+2, T, T+1)
        g.ts(f"XS_{l} stored")
        e(f"s_nop 1\n{skip}:")
        g.vm = saved
    def xb_write():
        e(f"""v_lshrrev_b32 v{vT}, 1, v{vLANE}
              v_cmp_eq_u32 vcc, s{sI}, v{vT}
              s_lshl_b32 s{sT}, s{sG}, 8
              s_lshl_b32 s3, s{sWQ}, 7
              s_add_u32 s{sT}, s{sT}, s3
              s_add_u32 s{sT}, s{sT}, {L_XB}
              v_and_b32 v{vT}, 1, v{vLANE}
              v_lshlrev_b32 v{vT}, 5, v{vT}
              v_add_u32 v{vT}, s{sT}, v{vT}
              s_and_b32 vcc_hi, vcc_hi, 0x00ffffff
              s_mov_b64 exec, vcc""")
        for ee in range(2):
            e(f"ds_write_b128 v{vT}, {vr(vX+8*ee,4)} offset:{ee*64}\nds_write_b128 v{vT}, {vr(vX+8*ee+4,4)} offset:{ee*64+16}")
        e("s_mov_b64 exec, -1")

    def tk_write(val):
        e(f"s_lshl_b32 s{sT}, s{sWV}, 2\ns_add_u32 s{sT}, s{sT}, {L_TK}\nv_mov_b32 v{vT}, s{sT}\nv_mov_b32 v{vT+1}, {val}\nds_write_b32 v{vT}, v{vT+1}")
    def tk_acquire():
        lp, ld = g.lab("tk"), g.lab("tkd")
        e(f"""s_xor_b32 s{sT}, s{sWV}, 2
              s_lshl_b32 s{sT}, s{sT}, 2
              s_add_u32 s{sT}, s{sT}, {L_TK}
              v_mov_b32 v{vT}, s{sT}
              {lp}:
              ds_read_b32 v{vT+1}, v{vT}
              s_waitcnt lgkmcnt(0)
              v_cmp_ne_u32 vcc, 0, v{vT+1}
              s_cbranch_vccz {ld}
              s_cmp_eq_u32 s{sSPINL}, 0
              s_cbranch_scc1 {ld}
              s_sub_u32 s{sSPINL}, s{sSPINL}, 1
              s_sleep 1
              s_branch {lp}
              {ld}:""")
        tk_write(1)

    def stag_write():
        e(f"s_lshl_b32 s{sT}, s{sG}, 2\ns_add_u32 s{sT}, s{sT}, {L_STG}\nv_mov_b32 v{vT}, s{sT}\nv_mov_b32 v{vT+1}, 1\nds_write_b32 v{vT}, v{vT+1}")

    s2_compute(0)
    g.ts("q0 stored")
    def start_moves(n):
        for _ in range(n):
            k = len(moved)
            if k < c['MV0']: early_moves(0, 1)
            elif k < c['MV0'] + c['MVB']: early_moves(1, 1)
    MVS = c['MVS']
    start_moves(MVS[0])
    g.wait_tok(('qst', 0))
    e("s_barrier")
    ATOM = c['FLG'] == "atom"
    e(f"""s_cmp_eq_u32 s{sWV}, 0
          s_cselect_b32 s{sT}, 1, 0
          v_cmp_gt_u32 vcc, s{sT}, v{vLANE}
          v_mov_b32 v{vT}, {OOB}""")
    if ATOM:
        e(f"""s_lshl_b32 s{sT}, s{sHKV}, 5
              v_mov_b32 v{vT+1}, s{sT}
              s_lshr_b32 s{sT}, s{sXCC}, 1
              s_mul_i32 s{sT2}, s{sT}, s{sT}
              s_lshl_b32 s{sT}, s{sT}, 6
              s_lshl_b32 s{sT2}, s{sT2}, 15
              s_or_b32 s{sT}, s{sT}, s{sT2}
              s_or_b32 s{sXCC}, s{sT}, 1
              v_cndmask_b32 v{vT}, v{vT}, v{vT+1}, vcc
              v_mov_b32 v{vT+1}, s{sXCC}""")
        g.vmem(f"buffer_atomic_add v{vT+1}, v{vT}, s[{S_DBG}:{S_DBG+3}], 0 offen sc1", 'flag')
    else:
        e(f"""v_mov_b32 v{vT+1}, s2
              v_cndmask_b32 v{vT}, v{vT}, v{vT+1}, vcc
              v_mov_b32 v{vT+1}, s{sXCC}""")
        g.vmem(f"buffer_store_byte v{vT+1}, v{vT}, s[{S_DBG}:{S_DBG+3}], 0 offen sc1", 'flag')
    start_moves(MVS[1])
    g.ts("moves0")
    FR = vST
    def init_poll(after):
        if ATOM:
            e(f"v_and_b32 v{vT}, 7, v{vLANE}\nv_lshlrev_b32 v{vT}, 5, v{vT}")
        else:
            e(f"v_lshlrev_b32 v{vT}, 2, v{vLANE}")
        def issue_f(): g.vmem(f"buffer_load_dword v{FR}, v{vT}, s[{S_DBG}:{S_DBG+3}], 0 offen sc1", 'poll')
        def check_f():
            if ATOM: e(f"v_and_b32 v{FR+1}, 63, v{FR}\nv_cmp_ne_u32 vcc, 32, v{FR+1}")
            else:    e(f"v_and_b32 v{FR+1}, 0x01010101, v{FR}\nv_cmp_ne_u32 vcc, 0x01010101, v{FR+1}")
        sl = g.c['SLEEP']; g.c['SLEEP'] = c['ISLEEP']
        g.poll(issue_f, check_f, "init", after)
        g.c['SLEEP'] = sl
        if ATOM:
            e(f"""s_lshl_b32 s{sT}, s{sXCC}, 5
                  v_cmp_ne_u32 vcc, s{sT}, v{FR}
                  s_lshl_b32 s{sT2}, 1, s{sHKV}
                  s_and_b32 s{sT}, vcc_lo, s{sT2}
                  s_cmp_eq_u32 s{sT}, 0
                  s_cselect_b32 s{sLOC}, 1, 0""")
        else:
            e(f"""s_and_b32 s{sT}, s{sHKV}, 3
                  s_lshl_b32 s{sT}, s{sT}, 3
                  v_lshrrev_b32 v{FR+1}, s{sT}, v{FR}
                  v_and_b32 v{FR+1}, 0xff, v{FR+1}
                  s_lshr_b32 s{sT}, s{sHKV}, 2
                  v_cmp_ne_u32 vcc, s{sXCC}, v{FR+1}
                  s_mov_b32 s{sT2}, 0x55555555
                  s_lshl_b32 s{sT2}, s{sT2}, s{sT}
                  s_and_b32 s{sT}, vcc_lo, s{sT2}
                  s_and_b32 s{sT2}, vcc_hi, s{sT2}
                  s_or_b32 s{sT}, s{sT}, s{sT2}
                  s_cmp_eq_u32 s{sT}, 0
                  s_cselect_b32 s{sLOC}, 1, 0""")
    if c['POLLW']:
        lsk = g.lab("ip")
        e(f"s_cmp_lg_u32 s{sWV}, 0\ns_cbranch_scc1 {lsk}")
        saved0 = list(g.vm)
        init_poll(None)
        e(f"v_mov_b32 v{vT}, {L_XB}\nv_mov_b32 v{vT+1}, s{sLOC}\nds_write_b32 v{vT}, v{vT+1}\ns_waitcnt lgkmcnt(0)\n{lsk}:")
        g.vm = saved0
        start_moves(MVS[2])
        e(f"""s_barrier
              v_mov_b32 v{vT}, {L_XB}
              ds_read_b32 v{vT+1}, v{vT}
              s_waitcnt lgkmcnt(0)
              v_readfirstlane_b32 s{sLOC}, v{vT+1}""")
    else:
        init_poll(lambda: start_moves(MVS[2]))
    g.ts("init done")

    lskip = g.lab("wskip")
    e(f"s_cmp_eq_u32 s{sG}, 0\ns_cbranch_scc1 {lskip}")
    saved = list(g.vm)
    w_voff('WO', vT, vT+1)
    w_load('WO', 0, vT, 'w'); w_load('WO', 1, vT, 'w')
    w_voff('WQ', vT, vT+1)
    w_load('WQ', 1, vT, 'w')
    e("s_waitcnt vmcnt(0)")
    e(f"s_lshl_b32 s{sT}, s{sWQ}, 2\ns_add_u32 s{sT}, s{sT}, {L_WFL}\nv_mov_b32 v{vT}, s{sT}\nv_mov_b32 v{vT+1}, 1\nds_write_b32 v{vT}, v{vT+1}")
    if c['SOLO']: e("s_branch Lfin")
    e(f"{lskip}:")
    g.vm = saved
    def stag_wait():
        if c['STAG'] >= 0:
            lp, ld = g.lab("stg"), g.lab("stgd")
            e(f"""v_mov_b32 v{vT}, {L_STG}
                  {lp}:
                  ds_read_b32 v{vT+1}, v{vT}
                  s_waitcnt lgkmcnt(0)
                  v_cmp_gt_u32 vcc, s{sG}, v{vT+1}
                  s_cbranch_vccz {ld}
                  s_cmp_eq_u32 s{sSPINL}, 0
                  s_cbranch_scc1 {ld}
                  s_sub_u32 s{sSPINL}, s{sSPINL}, 1
                  s_sleep 2
                  s_branch {lp}
                  {ld}:""")

    KP = c['KP']
    for l in range(4):
        if l == 0:
            if not c['STAGQ']: stag_wait()
            load_q(0, lambda: start_moves(MVS[3]))
            start_moves(99)
            if c['STAGQ']: stag_wait()
        else: load_q(l)
        g.ts(f"q{l} ready")
        if c['MUTEX'] >= 0:
            tk_acquire()
            g.ts(f"tk{l}")
        g.klimit = None
        g.pump()
        if l < 3: g.klimit = [l+1, KP[0]]
        if AL: g.resv = 2; g.resv_all = False
        g.deep = c['DEEP'][l]
        order = [t for t in range(16) if plan[l][t][0] is not None and (not plan[l][t][1] or ('K', l, t) in moved)]
        order += [t for t in range(16) if t not in order]
        for n, t in enumerate(order):
            hm, ld = plan[l][t]
            it = ('K', l, t)
            if hm is not None and (not ld or it in moved):
                g.cmt(f"resident K tile {t}")
                g.k_mfma(t, hm.r, False)
            else:
                g.k_ring(it, t, hm)
            if l == 0 and c['STAG'] == n: stag_write()
            if l == c['TSL']: g.ts(f"k{n}", True)
        g.ts(f"K{l} done")
        g.nop(8)
        m, t1, ls, nm = vST, vST+1, vST+2, vST+3
        e(f"v_max3_f32 v{m}, v{vS}, v{vS+1}, v{vS+2}\nv_max3_f32 v{t1}, v{vS+3}, v{vS+4}, v{vS+5}")
        k = 6
        while k < 64:
            tgt = m if ((k - 6)//2) % 2 == 0 else t1
            e(f"v_max3_f32 v{tgt}, v{tgt}, v{vS+k}, v{vS+k+1}"); k += 2
        e(f"v_max_f32 v{m}, v{m}, v{t1}")
        g.xrow_reduce([m], [t1], "v_max_f32")
        e(f"v_mul_f32 v{m}, s{sC}, v{m}\nv_mov_b32 v{ls}, 0\nv_mov_b32 v{nm}, 0")
        for t in range(16):
            b = vS + 4*t
            for r in range(4): e(f"v_fma_f32 v{b+r}, v{b+r}, s{sC}, -v{m}")
            for r in range(4): e(f"v_exp_f32 v{b+r}, v{b+r}")
            e(f"v_cvt_pk_bf16_f32 v{vQ+2*t}, v{b}, v{b+1}\nv_add_f32 v{ls}, v{ls}, v{b}\nv_add_f32 v{nm}, v{nm}, v{b+1}")
            e(f"v_cvt_pk_bf16_f32 v{vQ+2*t+1}, v{b+2}, v{b+3}\nv_add_f32 v{ls}, v{ls}, v{b+2}\nv_add_f32 v{nm}, v{nm}, v{b+3}")
        e(f"v_add_f32 v{ls}, v{ls}, v{nm}")
        g.xrow_reduce([ls], [t1], "v_add_f32")
        e(f"""v_mov_b32 v{t1}, v{ls}
              v_and_b32 v{nm}, 1, v{vLANE}
              v_lshlrev_b32 v{nm}, 3, v{nm}
              s_lshl_b32 s{sT}, s{sWV}, 4
              s_add_u32 s{sT}, s{sT}, {L_MLBUF}
              v_add_u32 v{nm}, s{sT}, v{nm}
              ds_write_b64 v{nm}, v[{m}:{m+1}]
              s_waitcnt lgkmcnt(0)""")
        g.ts(f"sm{l} done")
        for u in range(16):
            g.v_ring(('V', l, u), u)
            if l == 0 and c['STAG'] == 16 + u: stag_write()
            if c['MUTEX'] == u: tk_write(0)
            if l == c['TSL']: g.ts(f"v{u}", True)
        g.ts(f"V{l} done")
        e(f"""v_and_b32 v{vT}, 1, v{vLANE}
              v_lshlrev_b32 v{vT}, 10, v{vT}
              v_lshrrev_b32 v{vT+1}, 4, v{vLANE}
              v_lshl_add_u32 v{vT}, v{vT+1}, 4, v{vT}""")
        if AL: e(f"s_add_u32 s{sT}, s{sRING}, 16384")
        else:  e(f"s_lshl_b32 s{sT}, s{sWV}, 11\ns_add_u32 s{sT}, s{sT}, {L_OBUF}")
        e(f"v_add_u32 v{vT}, s{sT}, v{vT}")
        g.nop(8)
        e(f"s_mov_b64 exec, s[{sMC2}:{sMC2+1}]")
        for tp in range(16):
            e(f"ds_write_b128 v{vT}, {vr(vS+4*tp,4)} offset:{tp*64}")
            if tp == 11: g.lg(4)
        e("s_mov_b64 exec, -1")
        g.pair_sync()
        ML, OO, MM = 32, 40, 36
        e(f"""s_lshl_b32 s{sT}, s{sG}, 5
              s_lshl_b32 s{sT2}, s{sWQ}, 3
              s_add_u32 s{sT}, s{sT}, s{sT2}
              s_add_u32 s{sT}, s{sT}, {L_MLBUF}
              v_mov_b32 v{vT}, s{sT}
              s_mul_i32 s{sT}, s{sG}, {49152 if AL else 4096}
              s_lshl_b32 s{sT2}, s{sWQ}, 10
              s_add_u32 s{sT}, s{sT}, s{sT2}
              s_add_u32 s{sT}, s{sT}, {16384 if AL else L_OBUF}
              v_and_b32 v{vT+1}, 31, v{vLANE}
              v_lshlrev_b32 v{vT+1}, 5, v{vT+1}
              v_add_u32 v{vT+1}, s{sT}, v{vT+1}""")
        for w in range(2): e(f"ds_read_b64 {vr(ML+2*w,2)}, v{vT} offset:{w*16}")
        for w in range(2):
            OS = 24576 if AL else 2048
            e(f"ds_read_b128 {vr(OO+8*w,4)}, v{vT+1} offset:{w*OS}\nds_read_b128 {vr(OO+8*w+4,4)}, v{vT+1} offset:{w*OS+16}")
        A1, A2, A3 = 56, 57, 58
        if c['OPL'] == 0:
            e(f"""v_lshrrev_b32 v{A1}, 2, v{vLANE}
                  v_lshlrev_b32 v{A1}, 10, v{A1}
                  v_and_b32 v{A3}, 3, v{vLANE}
                  v_lshl_add_u32 v{A1}, v{A3}, 4, v{A1}""")
        else:
            e(f"v_lshlrev_b32 v{A1}, 4, v{vLANE}")
        e(f"""v_cmp_gt_u32 vcc, 32, v{vLANE}
              v_mov_b32 v{A3}, {OOB}
              s_nop 0
              v_cndmask_b32 v{A1}, v{A3}, v{A1}, vcc
              v_cmp_eq_u32 vcc, 0, v{vLANE}
              v_mov_b32 v{A2}, 0
              s_nop 0
              v_cndmask_b32 v{A2}, v{A3}, v{A2}, vcc""")
        g.lg(4)
        e(f"""v_max_f32 v{MM}, v{ML}, v{ML+2}
              v_sub_f32 v{ML}, v{ML}, v{MM}
              v_sub_f32 v{ML+2}, v{ML+2}, v{MM}
              v_exp_f32 v{ML}, v{ML}
              v_exp_f32 v{ML+2}, v{ML+2}
              s_nop 0
              v_mul_f32 v{MM+1}, v{ML}, v{ML+1}
              v_fmac_f32 v{MM+1}, v{ML+2}, v{ML+3}""")
        g.lg(0)
        for k in range(8): e(f"v_mul_f32 v{OO+k}, v{OO+k}, v{ML}")
        for k in range(8): e(f"v_fmac_f32 v{OO+k}, v{OO+8+k}, v{ML+2}")
        for k in range(4): e(f"v_cvt_pk_bf16_f32 v{OO+8+k}, v{OO+2*k}, v{OO+2*k+1}")
        for k in range(4): e(f"v_min_u32 v{OO+8+k}, -2, v{OO+8+k}")
        e(f"s_add_u32 s{sT2}, s{sOPWR}, {l*32768}\ns_add_u32 s{sT3}, s{sMLWR}, {l*MLS}")
        g.lstore([f"buffer_store_dwordx4 {vr(OO+8,4)}, v{A1}, s[{S_WS}:{S_WS+3}], s{sT2} offen",
                  f"buffer_store_dwordx2 {vr(MM,2)}, v{A2}, s[{S_WS}:{S_WS+3}], s{sT3} offen"], ['opst', 'mlst'], c['LPOL'])
        if c['HINT'][0]:
            e(f"v_mov_b32 v{A3}, 0")
            g.hint_store(l*4, A2, A3, wq=True)
        if l == 0 and c['STAG'] == 32: stag_write()
        g.ts(f"OP{l} stored")
        g.nop(2)
        VA, VB = 120, 121
        e(f"""v_and_b32 v{VA}, 15, v{vLANE}
              v_lshlrev_b32 v{VB}, {8 if c['MLX'] else 4}, v{VA}
              v_lshlrev_b32 v{VA}, {6 if c['OPL'] == 0 else 9}, v{VA}
              v_lshrrev_b32 v{vT}, 4, v{vLANE}
              v_lshl_add_u32 v{VA}, v{vT}, 4, v{VA}
              s_lshl_b32 s{sT}, s{sWQ}, 14
              s_add_u32 s{sT2}, s{sOPRD}, {l*32768}
              s_add_u32 s{sT2}, s{sT2}, s{sT}
              s_add_u32 s{sT3}, s{sMLRD}, {l*MLS}""")
        M2 = 124
        BG = [32, 128]
        def part_s1(nt):
            def issue():
                if c['MLX'] and nt:
                    e(f"s_add_u32 s{sT4}, s{sT3}, 4096")
                    g.vmem(f"buffer_load_dwordx2 {vr(M2+2*nt,2)}, v{VB}, s[{S_WS}:{S_WS+3}], s{sT4} offen sc1", 'poll')
                else:
                    g.vmem(f"buffer_load_dwordx2 {vr(M2+2*nt,2)}, v{VB}, s[{S_WS}:{S_WS+3}], s{sT3} offen offset:{256*nt} sc1", 'poll')
                for st in range(8):
                    if c['OPL'] == 0:
                        if (nt, st) == (0, 0): so = sT2
                        elif st % 4 == 0:
                            e(f"s_add_u32 s{sT4}, s{sT2}, {nt*8192 + st*1024}"); so = sT4
                        off = (st%4)*1024
                    else:
                        if nt == 0: so = sT2
                        elif st == 0:
                            e(f"s_add_u32 s{sT4}, s{sT2}, 8192"); so = sT4
                        off = st*64
                    g.vmem(f"buffer_load_dwordx4 {vr(BG[nt]+4*st,4)}, v{VA}, s[{S_WS}:{S_WS+3}], s{so} offen offset:{off} sc1", 'poll')
            return ([M2+2*nt, M2+2*nt+1] + list(range(BG[nt], BG[nt]+32)), issue)
        def after_s1():
            if l == 0:
                lds_wait(lambda: e(f"s_lshl_b32 s{sT}, s{sWQ}, 2\ns_add_u32 s{sT}, s{sT}, {L_WFL}\nv_mov_b32 v{vT}, s{sT}"), 1)
            if l < 3: g.allow(KP[1])
            if l == 3 and c['XS2']: xb_write()
            read_w('WO', l & 1, WOF, 122, 123)
        g.mpoll([part_s1(0), part_s1(1)], f"s1_{l}", after_s1, g.hint_bytes(l*4, 32, True) if c['HINT'][0] else None,
                (lambda k: g.swait('rec', VB, sT3, 4096*k + 4, f"s1_{l}")) if c['SW'][0] else None)
        if l == 0 and c['STAG'] == 33: stag_write()
        g.ts(f"S1_{l} got")
        D = 96
        for st in range(8):
            for nt in range(2):
                cc = "0" if st == 0 else vr(D+4*nt, 4)
                e(f"v_mfma_f32_16x16x32_bf16 {vr(D+4*nt,4)}, {vr(WOF+4*st,4)}, {vr(BG[nt]+4*st,4)}, {cc}")
        a0, a1, b0, b1 = 104, 105, 106, 107
        e(f"v_mov_b32 v{a0}, v{M2}\nv_mov_b32 v{a1}, v{M2+2}")
        g.dpp_reduce([a0, a1], "v_max_f32", P8)
        e(f"""v_sub_f32 v{a0}, v{M2}, v{a0}
              v_sub_f32 v{a1}, v{M2+2}, v{a1}
              v_exp_f32 v{a0}, v{a0}
              v_exp_f32 v{a1}, v{a1}
              s_nop 0
              v_mul_f32 v{b0}, v{a0}, v{M2+1}
              v_mul_f32 v{b1}, v{a1}, v{M2+3}""")
        g.dpp_reduce([b0, b1], "v_add_f32", P8)
        e(f"""v_rcp_f32 v{b0}, v{b0}
              v_rcp_f32 v{b1}, v{b1}
              s_nop 0
              v_mul_f32 v{a0}, v{a0}, v{b0}
              v_mul_f32 v{a1}, v{a1}, v{b1}""")
        e(f"""v_bfe_u32 v{vT}, v{vLANE}, 3, 1
              v_lshlrev_b32 v{vT}, 6, v{vT}
              v_lshrrev_b32 v{vT+1}, 4, v{vLANE}
              v_lshl_add_u32 v{vT}, v{vT+1}, 4, v{vT}
              s_lshl_b32 s{sT}, s{sWV}, 8
              s_add_u32 s{sT}, s{sT}, {L_RBUF}
              v_add_u32 v{vT}, s{sT}, v{vT}""")
        g.nop(4)
        for k in range(4): e(f"v_mul_f32 v{D+k}, v{D+k}, v{a0}\nv_mul_f32 v{D+4+k}, v{D+4+k}, v{a1}")
        g.dpp_reduce([D+k for k in range(8)], "v_add_f32", P8)
        e(f"ds_write_b128 v{vT}, {vr(D,4)}\nds_write_b128 v{vT}, {vr(D+4,4)} offset:128")
        g.pair_sync()
        e(f"s_add_u32 s{sT2}, s{sXPWR}, {l*3584}")
        def voff_xp(dst, tmp):
            if c['XPL']:
                e(f"v_lshlrev_b32 v{dst}, 4, v{vLANE}"); return
            e(f"v_lshrrev_b32 v{dst}, 1, v{vLANE}\nv_mul_u32_u24 v{dst}, 896, v{dst}\nv_and_b32 v{tmp}, 1, v{vLANE}\nv_lshl_add_u32 v{dst}, v{tmp}, 4, v{dst}")
        def cond_xp():
            e(f"s_cmp_lt_u32 s{sI}, 28\ns_cselect_b32 s{sT}, s{sT}, 0")
        reduce_store(L_RBUF, voff_xp, sT2, 'xpst', cond_xp, pol=c['XPOL'])
        g.ts(f"XP{l} stored")
        if c['XS2']: xs_reduce(l)
        if l == 3 and c['XS2']:
            pass
        elif l == 3:
            e(f"s_cmp_lg_u32 s2, 0\ns_cbranch_scc1 Lfin")
            xp_gather(l)
            for k in range(8): e(f"v_cvt_pk_bf16_f32 v{32+k}, v{vX+2*k}, v{vX+2*k+1}")
            xoff(sT)
            e(f"v_lshlrev_b32 v{vT}, 4, v{vLANE}\nv_mov_b32 v{vT+1}, {OOB}\nv_cndmask_b32 v{vT}, v{vT+1}, v{vT}, s[{sM56}:{sM56+1}]")
            g.vmem(f"buffer_store_dwordx4 v[32:35], v{vT}, s[{S_OUT}:{S_OUT+3}], s{sT} offen")
            g.vmem(f"buffer_store_dwordx4 v[36:39], v{vT}, s[{S_OUT}:{S_OUT+3}], s{sT} offen offset:896")
            g.ts("out stored")
        else:
            g.nop(2)
            xp_gather(l, lambda: (g.allow(KP[2]), read_w('WQ', (l+1) & 1, WQF, 124, 125)))
            s2_compute(l+1)
            g.ts(f"Q{l+1} stored")
            g.nop(2)
            g.allow(KP[3])
            early_moves(l+1, c['PRE_Q'][l])
    e("Lfin:")
    assert not g.q and len(g.free) == c['DEPTH'], (g.q, g.free)
    if c['TS']:
        g.ts("end")
        e(f"""s_lshl_b32 s{sT}, s2, 2
              s_add_u32 s{sT}, s{sT}, s{sWV}
              s_lshl_b32 s{sT}, s{sT}, 8
              s_add_u32 s{sT}, s{sT}, {W_TS_ABS}
              v_lshlrev_b32 v{vT}, 2, v{vLANE}
              buffer_store_dword v{vTS}, v{vT}, s[{S_WS}:{S_WS+3}], s{sT} offen""")
    e("Lend:")
    body = "\n".join(g.L)
    hdr = f"""; {NAME}
; @launch grid=(256,1,1) block=(256,1,1) lds={L_END}
.amdgcn_target "amdgcn-amd-amdhsa--gfx950"
.text
.globl {NAME}_kernel
.p2align 8
.type {NAME}_kernel,@function
{NAME}_kernel:
"""
    ftr = f"""
s_endpgm
.section .rodata,"a"
.p2align 6
.amdhsa_kernel {NAME}_kernel
  .amdhsa_next_free_vgpr 512
  .amdhsa_next_free_sgpr 102
  .amdhsa_accum_offset 256
  .amdhsa_group_segment_fixed_size 0
  .amdhsa_kernarg_size 104
  .amdhsa_user_sgpr_count 2
  .amdhsa_user_sgpr_kernarg_segment_ptr 1
  .amdhsa_system_sgpr_workgroup_id_x 1
.end_amdhsa_kernel
"""
    return hdr + body + ftr, g.tsnames

if __name__ == "__main__":
    import json
    out = sys.argv[1]
    cfg = json.loads(sys.argv[2]) if len(sys.argv) > 2 else {}
    s, names = build(cfg)
    open(out, "w").write(s)
    if names: json.dump(names, open(out + ".ts.json", "w"))
    print(out, len(s), "bytes", len(s.splitlines()), "lines")
```
